```python
import torch

def _softmax(x, axis=-1):
    return torch.softmax(x, dim=axis)
def _gelu(x):
    return torch.nn.functional.gelu(x, approximate="tanh")
def _silu(x):
    return torch.nn.functional.silu(x)
def _sigmoid(x):
    return torch.sigmoid(x)
def _layernorm(x, axis=-1, eps=1e-5):
    m = x.mean(dim=axis, keepdim=True)
    v = x.var(dim=axis, keepdim=True, unbiased=False)
    return (x - m) / torch.sqrt(v + eps)
def _scatter_add(tgt, idx, src, axis=0):
    return tgt.clone().index_add_(axis, idx, src)
def _segment_sum(src, seg, n):
    out = torch.zeros((n,) + src.shape[1:], dtype=src.dtype)
    return out.index_add_(0, seg, src)
def _pad(x, pw):
    flat = tuple(v for pair in reversed(pw) for v in pair)
    return torch.nn.functional.pad(x, flat)

kernel_name = 'recurrent_scan__sliding_local_dilated__dense_activation_gelu__prompt'

def setup_inputs():

    _w = (lambda a: (lambda t: t.to(torch.bfloat16) if t.is_floating_point() else t)(torch.as_tensor(a)))
    def _A_setup():
        B, S, D = 1, 2048, 512
        return {
            "x": _w((lambda *s: torch.randn(*s, dtype=torch.bfloat16) * 0.05)(B, S, D)),
            "wqkv": _w((lambda *s: torch.randn(*s, dtype=torch.bfloat16) * 0.2)(D, 3 * D)),
            "wo": _w((lambda *s: torch.randn(*s, dtype=torch.bfloat16) * 0.2)(D, D)),
        }
    _A_in = _A_setup()

    def _B_setup():
        B, S, D, F = 1, 2048, 512, 1792
        return {
            "x": _w((lambda *s: torch.randn(*s, dtype=torch.bfloat16) * 0.05)(B, S, D)),
            "w1": _w((lambda *s: torch.randn(*s, dtype=torch.bfloat16) * 0.4)(D, F) * (D ** -0.5)),
            "b1": _w((lambda *s: torch.randn(*s, dtype=torch.bfloat16) * 0.4)(F) * 0.01),
            "w2": _w((lambda *s: torch.randn(*s, dtype=torch.bfloat16) * 0.1)(F, D) * (F ** -0.5)),
            "b2": _w((lambda *s: torch.randn(*s, dtype=torch.bfloat16) * 0.1)(D) * 0.01),
        }
    _B_in = _B_setup()

    return {
        "A_x": _A_in["x"],
        "A_wqkv": _A_in["wqkv"],
        "A_wo": _A_in["wo"],
        "B_x": _B_in["x"],
        "B_w1": _B_in["w1"],
        "B_b1": _B_in["b1"],
        "B_w2": _B_in["w2"],
        "B_b2": _B_in["b2"],
    }

def reference(A_x, A_wqkv, A_wo, B_x, B_w1, B_b1, B_w2, B_b2):
    def _A_ref(x, wqkv, wo):
        B, S, D = x.shape
        H = 32; Dh = D // H
        W, dil = 8, 2
        qkv = (lambda x, *d: x.permute(*d))((x @ wqkv).reshape(B, S, 3, H, Dh), 2, 0, 3, 1, 4)
        q, k, v = qkv[0], qkv[1], qkv[2]
        scale = Dh ** -0.5
        pos = torch.arange(S)
        off = torch.arange(W) * dil
        idx = pos[:, None] - off[None, :]
        mask = idx >= 0
        idx_c = torch.where(mask, idx, 0).reshape(-1)
        kg = k[:, :, idx_c, :].reshape(B, H, S, W, Dh)
        vg = v[:, :, idx_c, :].reshape(B, H, S, W, Dh)
        logits = torch.einsum("bhsd,bhswd->bhsw", q, kg) * scale
        logits = torch.where(mask[None, None, :, :], logits, -1e9)
        attn = _softmax(logits, axis=-1)
        o = torch.einsum("bhsw,bhswd->bhsd", attn, vg)
        return (lambda x, *d: x.permute(*d))(o, 0, 2, 1, 3).reshape(B, S, D) @ wo

    def _B_ref(x, w1, b1, w2, b2):
        h = torch.einsum("bsd,df->bsf", x, w1) + b1
        h = _gelu(h)
        return torch.einsum("bsf,fd->bsd", h, w2) + b2

    x = A_x
    xn = _layernorm(x, axis=-1)
    s = _A_ref(xn, A_wqkv, A_wo)
    g = _silu(_B_ref(xn, B_w1, B_b1, B_w2, B_b2))
    return x + s * g
```

```python
import re, copy

REG = re.compile(r'^(-|\|)?(?:abs\()?([vas])(?:(\d+)|\[(\d+):(\d+)\])\)?\|?$')
def regs_of(op):
    op = op.strip()
    if op in ('vcc', 'exec', 'm0', 'scc'): return {op}
    if op in ('vcc_lo', 'vcc_hi'): return {'vcc'}
    if op in ('exec_lo', 'exec_hi'): return {'exec'}
    m = REG.match(op)
    if not m: return set()
    f = m.group(2)
    if m.group(3) is not None: return {f + m.group(3)}
    return {f + str(i) for i in range(int(m.group(4)), int(m.group(5)) + 1)}

TRANS = ('v_exp_f32', 'v_rcp_f32', 'v_rsq_f32', 'v_sqrt_f32', 'v_log_f32')
PASSES = {'v_mfma_f32_32x32x16_bf16': 8, 'v_mfma_f32_16x16x32_bf16': 4, 'v_mfma_f32_4x4x4_16b_bf16': 2,
          'v_smfmac_f32_16x16x64_bf16': 4}

class I:
    def __init__(self, text, tag=None):
        self.text = text.strip(); self.tag = tag
        t = self.text.split(';')[0].strip()
        self.label = t.endswith(':'); self.directive = t.startswith('.')
        self.pseudo = t.startswith('@')
        parts = t.split(None, 1)
        self.op = parts[0] if parts else ''
        base = re.sub(r'_(e32|e64|dpp|sdwa)$', '', self.op); self.base = base
        rest = parts[1] if len(parts) > 1 else ''
        toks = []; depth = 0; cur = ''
        for ch in rest:
            if ch == '[': depth += 1
            if ch == ']': depth -= 1
            if ch == ',' and depth == 0: toks.append(cur.strip()); cur = ''
            else: cur += ch
        if cur.strip(): toks.append(cur.strip())
        mods = ''
        if toks:
            last = toks[-1].split(None, 1)
            toks[-1] = last[0]; mods = last[1] if len(last) > 1 else ''
        self.ops = toks; self.mods = mods
        self.rd = set(); self.wr = set(); self.kind = 'other'
        self.srcA = self.srcB = self.srcC = set(); self.passes = 0
        self.dma = False; self.store_data = set()
        R = [regs_of(x) for x in toks]
        allr = lambda l: set().union(*l) if l else set()
        if self.label or self.directive or self.pseudo or not self.op: self.kind = 'meta'
        elif base in PASSES:
            self.kind = 'mfma'; self.passes = PASSES[base]
            self.wr = R[0]; self.srcA = R[1]; self.srcB = R[2]
            if base.startswith('v_smfmac'): self.srcC = R[0]; self.srcB = R[2] | R[3]
            else: self.srcC = R[3]
            self.rd = self.srcA | self.srcB | self.srcC
        elif base.startswith('v_'):
            self.kind = 'trans' if base in TRANS else 'valu'
            if base.startswith('v_permlane') or base == 'v_swap_b32': self.wr = R[0] | R[1]; self.rd = R[0] | R[1]
            elif base.startswith('v_cmp'): self.wr = R[0]; self.rd = allr(R[1:])
            elif base in ('v_add_co_u32', 'v_addc_co_u32'): self.wr = R[0] | R[1]; self.rd = allr(R[2:])
            else:
                self.wr = R[0]; self.rd = allr(R[1:])
                if base in ('v_fmac_f32', 'v_dot2c_f32_bf16') or 'dpp' in self.op or 'row_' in mods or 'quad_perm' in mods: self.rd |= R[0]
            self.dpp = 'dpp' in self.op
        elif base.startswith('ds_'):
            self.kind = 'ds'
            if base.startswith('ds_read') or base.startswith('ds_bpermute'): self.wr = R[0]; self.rd = allr(R[1:])
            else: self.rd = allr(R)
        elif base.startswith('buffer_'):
            self.kind = 'vmem'
            if 'lds' in mods.split(): self.dma = True; self.rd = allr(R) | {'m0'}
            elif base.startswith('buffer_load'):
                self.wr = R[0]; self.rd = allr(R[1:])
                if 'd16' in base: self.rd |= R[0]
            elif base in ('buffer_inv', 'buffer_wbl2'): pass
            else:
                self.rd = allr(R)
                if base.endswith('x4') or base.endswith('x3'): self.store_data = R[0]
        elif base.startswith('s_load') or base in ('s_memtime', 's_memrealtime'):
            self.kind = 'smem'; self.wr = R[0]; self.rd = allr(R[1:])
        elif base.startswith('s_'):
            self.kind = 'salu'
            if base.startswith('s_cmp') or base.startswith('s_cbranch') or base in ('s_branch', 's_barrier', 's_waitcnt', 's_nop', 's_sleep', 's_setprio', 's_endpgm'):
                self.rd = allr(R)
                if 'vcc' in base: self.rd |= {'vcc'}
            else:
                self.wr = R[0]; self.rd = allr(R[1:])
                if 'saveexec' in base: self.wr |= {'exec'}
        else:
            raise ValueError('unknown instruction ' + self.text)
    def states(self):
        if self.kind == 'meta': return 0
        if self.base == 's_nop': return int(self.ops[0]) + 1
        return 1
    def cost(self):
        if self.kind == 'meta': return 0
        if self.kind == 'trans': return 2.5
        if self.kind == 'vmem': return 3.5
        if self.kind == 'mfma': return 2
        return 1

def need_states(p, c):
    n = 0
    vg = lambda s: {r for r in s if r[0] in 'va' and r != 'vcc'}
    sg = lambda s: {r for r in s if r[0] == 's' or r == 'vcc'}
    if p.kind in ('valu', 'trans'):
        w = vg(p.wr)
        if c.kind == 'mfma' and w & c.rd: n = max(n, 2)
        if c.kind in ('valu', 'trans'):
            if c.base.startswith('v_permlane') and w & c.rd: n = max(n, 2)
            if getattr(c, 'dpp', False) and w & c.rd: n = max(n, 2)
            if c.base in ('v_readfirstlane_b32', 'v_readlane_b32') and w & c.rd: n = max(n, 1)
            if p.kind == 'trans' and w & (c.rd | c.wr): n = max(n, 1)
            if sg(p.wr) & c.rd: n = max(n, 2)
            if ('op_sel' in p.mods and not p.base.startswith('v_pk') or 'sdwa' in p.op) and w & (c.rd | c.wr): n = max(n, 1)
            if p.base.startswith('v_dot') and w & (c.rd | c.wr) and not (c.base == p.base and not (w & set().union(*[regs_of(x) for x in c.ops[1:3]]))): n = max(n, 3)
        if p.kind == 'trans' and c.kind in ('ds', 'vmem') and w & c.rd: n = max(n, 1)
        if p.base.startswith('v_dot') and c.kind in ('ds', 'vmem', 'mfma') and w & c.rd: n = max(n, 3)
        if c.kind == 'vmem' and sg(p.wr) & c.rd: n = max(n, 5)
        if c.kind == 'salu' and sg(p.wr) & c.rd: n = max(n, 5 if 'vcc' in c.base else 4)
        if 'exec' in p.wr and c.kind == 'mfma': n = max(n, 4)
    if p.kind == 'mfma':
        k = {2: 0, 4: 1, 8: 2}[p.passes]
        if c.kind == 'mfma':
            if p.wr & (c.srcA | c.srcB): n = max(n, (5, 8, 12)[k])
            if p.wr & c.srcC:
                if p.wr == c.srcC and p.passes == c.passes: n = max(n, (2, 0, 0)[k])
                else: n = max(n, (4, 6, 10)[k])
            elif p.wr & c.wr and not (p.wr == c.wr and p.passes == c.passes): n = max(n, (5, 8, 12)[k])
        elif c.kind in ('valu', 'trans', 'ds', 'vmem'):
            if p.wr & (c.rd | c.wr): n = max(n, (5, 8, 12)[k])
            if p.srcC & c.wr: n = max(n, (1, 3, 7)[k])
    if p.kind == 'salu' and 'm0' in p.wr and c.dma: n = max(n, 1)
    if p.store_data and p.store_data & c.wr: n = max(n, 2)
    return n

class Stream:
    def __init__(self):
        self.out = []; self.hist = []
        self.lgkm = []; self.vm = []; self.smem = False
        self.nops = 0; self.waits = 0
    def fork(self):
        s = Stream(); s.hist = list(self.hist); s.lgkm = list(self.lgkm); s.vm = list(self.vm); s.smem = self.smem
        return s
    def _raw(self, i):
        self.out.append(i)
        if i.kind != 'meta':
            self.hist.append(i); self.hist = self.hist[-24:]
    def _wait(self, vm=None, lg=None):
        t = 's_waitcnt'
        if vm is not None:
            vm = min(vm, 63); t += f' vmcnt({vm})'; self.vm = self.vm[len(self.vm) - vm:] if vm < len(self.vm) else self.vm
        if lg is not None:
            lg = min(lg, 15); t += f' lgkmcnt({lg})'; self.lgkm = self.lgkm[len(self.lgkm) - lg:] if lg < len(self.lgkm) else self.lgkm
            if lg == 0: self.smem = False
        self._raw(I(t)); self.waits += 1
    def e(self, text, tag=None):
        if isinstance(text, (list, tuple)):
            for t in text: self.e(t)
            return
        i = text if isinstance(text, I) else I(text, tag)
        if i.pseudo:
            self._pseudo(i); return
        if i.kind == 'meta':
            self._raw(i); return
        touch = i.rd | i.wr
        nl = nv = None
        for k, q in enumerate(self.lgkm):
            if q.wr & touch:
                nl = 0 if (q.kind == 'smem' or self.smem) else len(self.lgkm) - 1 - k
        for k, q in enumerate(self.vm):
            if q.wr & touch: nv = len(self.vm) - 1 - k
        if nl is not None or nv is not None: self._wait(nv, nl)
        need = 0; dist = 0
        for p in reversed(self.hist):
            need = max(need, need_states(p, i) - dist)
            dist += p.states()
            if dist >= 20: break
        if need > 0:
            self._raw(I(f's_nop {need-1}')); self.nops += need
        self._raw(i)
        if i.kind == 'ds': self.lgkm.append(i)
        if i.kind == 'smem': self.lgkm.append(i); self.smem = True
        if i.kind == 'vmem': self.vm.append(i)
        if i.base == 's_waitcnt':
            m = re.search(r'vmcnt\((\d+)\)', i.text)
            if m: n = int(m.group(1)); self.vm = self.vm[len(self.vm) - n:] if n < len(self.vm) else self.vm
            m = re.search(r'lgkmcnt\((\d+)\)', i.text)
            if m:
                n = int(m.group(1)); self.lgkm = self.lgkm[len(self.lgkm) - n:] if n < len(self.lgkm) else self.lgkm
                if n == 0: self.smem = False
    def _pseudo(self, i):
        assert i.op == '@wait'
        tags = set(i.text.split()[1:])
        nv = nl = None
        for k, q in enumerate(self.vm):
            if q.tag in tags: nv = len(self.vm) - 1 - k
        for k, q in enumerate(self.lgkm):
            if q.tag in tags: nl = 0 if self.smem else len(self.lgkm) - 1 - k
        if nv is not None or nl is not None: self._wait(nv, nl)
    def text(self):
        return '\n'.join(('' if (i.label or i.directive) else '    ') + i.text for i in self.out) + '\n'

def interleave(spine, fillers, lo=0, hi=None):
    hi = len(spine) if hi is None else hi
    mk = lambda x: x if isinstance(x, I) else I(x)
    spine = [[mk(x) for x in g] for g in spine]; fillers = [mk(x) for x in fillers]
    def room(g):
        pipe = sum(x.passes for x in g if x.kind == 'mfma')
        return pipe - sum(x.cost() for x in g)
    rooms = [room(g) if lo <= k < hi else None for k, g in enumerate(spine)]
    total = sum(f.cost() for f in fillers)
    act = [r for r in rooms if r is not None]
    a, b = -64.0, 4096.0
    for _ in range(50):
        mid = (a + b)/2
        if sum(max(0, r + mid) for r in act) >= total: b = mid
        else: a = mid
    out = []; fi = 0; credit = 0.0
    last = max(k for k, r in enumerate(rooms) if r is not None)
    for k, g in enumerate(spine):
        g = list(g)
        if rooms[k] is not None:
            credit += max(0, rooms[k] + b)
            while fi < len(fillers) and (credit >= fillers[fi].cost()*0.5 or k == last):
                credit -= fillers[fi].cost(); g.append(fillers[fi]); fi += 1
        out.append(g)
    return out
```

```python
import sys, math, struct
from asmlib import I, Stream, interleave

KN = "recurrent_scan__sliding_local_dilated__dense_activation_gelu__prompt_kernel"
def fl(x): return '0x%08x' % struct.unpack('<I', struct.pack('<f', x))[0]

class Cfg:
    D = 3
    AD = 6
    stamps = False
    spin = 1 << 20
    out_flags = ''
    rot = True
cfg = Cfg()

BS = 73*4096
FLAG = 0xA00000
STAMP = 0xB00000
WS_BYTES = 0xC00000
L_W, L_X, L_H, L_M = 0, 65536, 131072, 151552
HROW = 1040
L_ST = L_M
L_R = L_M + 4096
L_KH = L_M + 6144
LDS_BYTES = 163840
LOG2E = 1.4426950408889634
NEG = -1.0e30

sW, sMT, sN, sROT = 's4', 's5', 's6', 's7'
X, W, WS, BM, OUT, DBG, B1, B2, CLR, RDY, CODE, AS = [f's[{i}:{i+3}]' for i in (8, 12, 16, 20, 24, 28, 32, 36, 40, 44, 48, 84)]
sXO = [f's{52+i}' for i in range(8)]
sWO = [f's{60+i}' for i in range(8)]
sP, sCG, sBLK, sNT = 's68', 's69', 's70', 's71'
sXL, sWL, sSL = 's72', 's73', 's74'
sST = ['s75', 's76']
sT = ['s77', 's78', 's79', 's80', 's81', 's82']
sFL = 's83'
sBO, sAO, sQ = 's88', 's89', 's90'
sMK = 's[92:93]'
sTS = 's[94:95]'; sT0 = 's[96:97]'; sSO = 's98'

def v(i, n=1): return f'v{i}' if n == 1 else f'v[{i}:{i+n-1}]'
def a(i, n=1): return f'a{i}' if n == 1 else f'a[{i}:{i+n-1}]'
class Alloc:
    def __init__(self, start): self.n = start
    def __call__(self, k=1, al=1):
        self.n = (self.n + al - 1)//al*al; r = self.n; self.n += k
        assert self.n <= 256, self.n
        return r

M32, M16, M4, SM = 'v_mfma_f32_32x32x16_bf16', 'v_mfma_f32_16x16x32_bf16', 'v_mfma_f32_4x4x4_16b_bf16', 'v_smfmac_f32_16x16x64_bf16'

al = Alloc(1)
vT = [al() for _ in range(7)]
vL16 = al(); vRDY = al(); vSTA = al()
vWD = [al() for _ in range(2)]; vWR = [al() for _ in range(2)]
vBD = [al() for _ in range(4)]; vBR = [al() for _ in range(2)]
vIDX = al(); vSEL = al(4, 2)
vTF = [al(4, 2), al(4, 2)]; vF = al(4, 2); vCS = al(4, 2)
NF = 6
vWF = al(4*NF, 2)
vACC = [[al(16, 2), al(16, 2)], [al(16, 2), al(16, 2)]]
COMMON_END = al.n

def stamp(s, k):
    if not cfg.stamps: return
    s.e(f's_memtime {sTS}'); s.e('s_waitcnt lgkmcnt(0)')
    s.e(f's_sub_u32 s94, s94, s96'); s.e(f'v_mov_b32 {v(vSTA)}, s94')
    s.e(f'buffer_store_dword {v(vSTA)}, off, {WS}, {sSO} offset:{4*k}')

def prologue(s, code_bytes):
    e = s.e
    e('s_cmp_ge_u32 s2, 256'); e('s_cbranch_scc1 L_exit')
    if cfg.stamps: e(f's_memtime {sT0}')
    e('s_load_dwordx2 s[8:9], s[0:1], 0')
    e('s_load_dwordx2 s[12:13], s[0:1], 32')
    e('s_load_dwordx2 s[78:79], s[0:1], 8')
    e('s_load_dwordx2 s[16:17], s[0:1], 80')
    e('s_load_dwordx2 s[20:21], s[0:1], 48')
    e('s_load_dwordx2 s[80:81], s[0:1], 16')
    e('s_load_dwordx2 s[24:25], s[0:1], 64')
    e('s_load_dwordx2 s[28:29], s[0:1], 72')
    e('s_load_dwordx2 s[32:33], s[0:1], 40')
    e('s_load_dwordx2 s[36:37], s[0:1], 56')
    e('s_getpc_b64 s[48:49]')
    e(f's_mov_b32 s50, {code_bytes}'); e('s_mov_b32 s51, 0x20000')
    e('s_lshr_b32 s3, s2, 3'); e('s_lshl_b32 s77, s3, 7')
    e(f'v_lshlrev_b32 {v(vT[0])}, 12, v0')
    e(f'buffer_load_dword {v(vRDY)}, {v(vT[0])}, {CODE}, s77 offen')
    e(f'v_lshrrev_b32 {v(vT[0])}, 6, v0')
    e(f'v_lshlrev_b32 {v(vT[5])}, 8, v0')
    e(f'v_readfirstlane_b32 {sW}, {v(vT[0])}')
    e('v_and_b32 v0, 63, v0')
    e(f'v_lshlrev_b32 {v(vL16)}, 4, v0')
    e('s_and_b32 s77, s3, 3')
    e(f's_lshr_b32 {sN}, s3, 2'); e(f's_mov_b32 {sNT}, {sN}')
    e(f's_and_b32 {sBLK}, s2, 7'); e(f's_lshl_b32 {sBLK}, {sBLK}, 2'); e(f's_add_u32 {sBLK}, {sBLK}, s77')
    e(f's_and_b32 {sMT}, {sBLK}, 15')
    if cfg.rot:
        e(f's_lshl_b32 {sROT}, s77, 1'); e(f's_add_u32 {sROT}, {sROT}, {sN}')
    else: e(f's_mov_b32 {sROT}, 0')
    e(f's_and_b32 {sP}, {sW}, 1'); e(f's_lshr_b32 {sCG}, {sW}, 1')
    for c in range(8):
        e(f's_add_u32 s77, {sROT}, {c}'); e('s_and_b32 s77, s77, 7'); e(f's_lshl_b32 {sXO[c]}, s77, 7')
    e(f's_lshl_b32 {sXL}, {sW}, 12'); e(f's_add_u32 {sXL}, {sXL}, {L_X}')
    e(f's_lshl_b32 {sWL}, {sW}, 11'); e(f's_lshl_b32 {sSL}, {sW}, 10')
    for r, n in ((10, 2097152), (18, WS_BYTES), (26, 2097152), (30, 256), (34, 3584), (38, 1024)):
        e(f's_mov_b32 s{r}, {n}')
    for r in (11, 15, 19, 23, 27, 31, 35, 39, 43, 47, 87): e(f's_mov_b32 s{r}, 0x20000')
    e('s_cmp_eq_u32 s2, 0'); e(f's_cselect_b32 s42, {WS_BYTES}, 0'); e('s_cselect_b32 s46, 256, 0')
    if cfg.stamps:
        e('s_lshl_b32 s77, s2, 2'); e(f's_add_u32 s77, s77, {sW}'); e(f's_lshl_b32 {sSO}, s77, 7'); e(f's_add_u32 {sSO}, {sSO}, {STAMP}')
    e('s_bitcmp1_b32 s2, 2'); e('s_cbranch_scc1 L_att')

def xw_setup(s, stride, vXD, colbase):
    e = s.e; t0, t1, t2 = [v(x) for x in vT[:3]]
    for c in range(8): e(f's_mul_i32 {sWO[c]}, {sXO[c]}, {stride//2}')
    e(f's_lshl_b32 s77, {sMT}, 7'); e(f's_lshl_b32 s82, {sP}, 6'); e('s_add_u32 s77, s77, s82'); e(f's_add_u32 s77, s77, {sCG}')
    e('s_lshl_b32 s77, s77, 10')
    e(f'v_lshrrev_b32 {t0}, 3, v0'); e(f'v_lshrrev_b32 {t1}, 4, v0'); e(f'v_and_b32 {t2}, 7, v0')
    e(f'v_xor_b32 {v(vXD[0])}, {t1}, {t2}'); e(f'v_lshlrev_b32 {v(vXD[0])}, 4, {v(vXD[0])}')
    e(f'v_lshl_add_u32 {v(vXD[0])}, {t0}, 11, {v(vXD[0])}'); e(f'v_add_u32 {v(vXD[0])}, s77, {v(vXD[0])}')
    e(f'v_xor_b32 {v(vXD[1])}, 64, {v(vXD[0])}'); e(f'v_add_u32 {v(vXD[1])}, {16384-1024}, {v(vXD[1])}')
    e(f'v_add_u32 {v(vXD[2])}, {2*(16384-1024)}, {v(vXD[0])}'); e(f'v_add_u32 {v(vXD[3])}, {2*(16384-1024)}, {v(vXD[1])}')
    e(f'v_and_b32 {t1}, 1, {t1}'); e(f'v_lshlrev_b32 {t1}, 2, {t1}'); e(f'v_xor_b32 {t1}, {t1}, {t2}'); e(f'v_lshlrev_b32 {t1}, 4, {t1}')
    e(f's_mul_i32 s77, {sW}, {16*stride}'); e(f's_add_u32 s77, s77, {colbase}')
    e(f'v_mul_u32_u24 {v(vWD[0])}, {stride}, {t0}'); e(f'v_add3_u32 {v(vWD[0])}, {v(vWD[0])}, {t1}, s77')
    e(f'v_add_u32 {v(vWD[1])}, {8*stride-1024}, {v(vWD[0])}')
    e(f's_lshl_b32 s77, {sNT}, 7')
    e(f'v_lshlrev_b32 {v(vBD[0])}, 10, {t0}'); e(f'v_add3_u32 {v(vBD[0])}, {v(vBD[0])}, {t1}, s77')

def job(G, vXD, single=None):
    l = []; tag = f'c{G}'
    if G < 8:
        l.append(I(f's_add_u32 m0, {sXL}, {(G & 3)*16384}'))
        for q in range(4): l.append(I(f'buffer_load_dwordx4 {v(vXD[q])}, {X}, {sXO[G]} offen offset:{q*1024} lds', tag))
    if single is not None:
        l.append(I(f's_add_u32 m0, {sSL}, {L_W + (G & 7)*8192}'))
        l.append(I(f'buffer_load_dwordx4 {v(single)}, {W}, {sWO[G & 7]} offen lds', tag))
    else:
        l.append(I(f's_add_u32 m0, {sWL}, {L_W + (G & 7)*8192}'))
        for q in range(2): l.append(I(f'buffer_load_dwordx4 {v(vWD[q])}, {W}, {sWO[G & 7]} offen offset:{q*1024} lds', tag))
    return l

def start_loads(s, vXD):
    e = s.e
    e('s_waitcnt lgkmcnt(0)')
    e('s_mov_b32 s40, s16'); e('s_mov_b32 s41, s17'); e('s_mov_b32 s44, s28'); e('s_mov_b32 s45, s29')
    z = vACC[1][0]
    for i in range(4): e(f'v_mov_b32 {v(z+i)}, 0')
    e(f's_mov_b32 s77, {FLAG}')
    e(I(f'buffer_store_dwordx4 {v(z, 4)}, {v(vT[5])}, {CLR}, s77 offen sc1', 'c0'))
    for G in (0, 1):
        for i in job(G, vXD): e(i)

def read_setup(s, vXR, nslots_swapped):
    e = s.e; t0, t1, t2, t3 = [v(x) for x in vT[:4]]
    e(f'v_and_b32 {t0}, 31, v0'); e(f'v_lshrrev_b32 {t1}, 5, v0'); e(f'v_bfe_u32 {t2}, v0, 1, 3')
    e(f'v_xor_b32 {t2}, {t2}, {t1}'); e(f'v_lshlrev_b32 {t2}, 4, {t2}'); e(f'v_lshl_add_u32 {t2}, {t0}, 7, {t2}')
    e(f's_lshl_b32 s77, {sCG}, 6'); e(f'v_xor_b32 {t2}, s77, {t2}')
    e(f's_lshl_b32 s77, {sP}, 13'); e(f's_add_u32 s77, s77, {L_X}')
    if nslots_swapped:
        e(f's_lshl_b32 s82, {sCG}, 12'); e('s_add_u32 s77, s77, s82')
    e(f'v_add_u32 {v(vXR[0])}, s77, {t2}')
    for k in range(1, 4): e(f'v_xor_b32 {v(vXR[k])}, {k << 5}, {v(vXR[0])}')
    if nslots_swapped:
        for k in range(4): e(f'v_xor_b32 {v(vXR[4+k])}, 4096, {v(vXR[k])}')
    e(f'v_bfe_u32 {t0}, v0, 2, 2'); e(f'v_bfe_u32 {t2}, v0, 4, 1'); e(f'v_and_b32 {t3}, 3, v0')
    e(f'v_lshlrev_b32 {t3}, 3, {t3}'); e(f'v_lshl_add_u32 {t3}, {t2}, 5, {t3}')
    e(f'v_lshl_add_u32 {t2}, {t1}, 3, {t0}')
    w0 = v(vWR[0])
    e(f'v_lshl_add_u32 {w0}, {t2}, 7, {t3}')
    e(f'v_bfe_u32 {v(vT[4])}, v0, 3, 1'); e(f'v_xor_b32 {v(vT[4])}, {sCG}, {v(vT[4])}'); e(f'v_lshl_add_u32 {w0}, {v(vT[4])}, 6, {w0}')
    e(f's_lshl_b32 s77, {sCG}, 12'); e(f'v_add_u32 {w0}, s77, {w0}'); e(f'v_xor_b32 {v(vWR[1])}, 4096, {w0}')
    e(f'v_mov_b32 {v(vIDX)}, 0x44444444'); e(f'v_mov_b32 {v(vT[4])}, 0xeeeeeeee')
    e(f'v_and_b32 {t0}, 1, v0'); e(f'v_cmp_eq_u32 vcc, 1, {t0}'); e(f'v_cndmask_b32 {v(vIDX)}, {v(vIDX)}, {v(vT[4])}, vcc')
    e(f'v_and_b32 {t0}, 4, v0'); e(f'v_cmp_eq_u32 vcc, 0, {t0}'); e(f'v_mov_b32 {v(vT[4])}, 0x3f803f80')
    e(f'v_cndmask_b32 {v(vSEL)}, 0, {v(vT[4])}, vcc'); e(f'v_mov_b32 {v(vSEL+1)}, {v(vSEL)}')
    e(f'v_sub_u32 {v(vSEL+2)}, {v(vT[4])}, {v(vSEL)}'); e(f'v_mov_b32 {v(vSEL+3)}, {v(vSEL+2)}')
    for r in (vTF[0]+2, vTF[0]+3, vTF[1]+2, vTF[1]+3, vF+1, vF+2, vF+3, vCS, vCS+1, vCS+2, vCS+3): e(f'v_mov_b32 {v(r)}, 0')

def p2_setup(s):
    e = s.e; t0, t1, t2, t3 = [v(x) for x in vT[:4]]
    for q in range(1, 4): e(f'v_add_u32 {v(vBD[q])}, {q*(8192-1024)}, {v(vBD[0])}')
    e(f's_mul_i32 s77, {sW}, 37'); e('s_add_u32 s77, s77, -4'); e(f's_cmp_eq_u32 {sW}, 1'); e('s_cselect_b32 s77, 32, s77'); e('s_cselect_b32 s82, 38, 37')
    e(f's_cmp_eq_u32 {sW}, 0'); e('s_cselect_b32 s77, 0, s77'); e('s_cselect_b32 s82, 32, s82')
    e('s_cselect_b32 s20, s80, s20'); e('s_cselect_b32 s21, s81, s21'); e('s_cselect_b32 s3, 0, 32')
    e('s_sub_u32 s3, s77, s3'); e('s_lshl_b32 s3, s3, 14'); e('s_add_u32 s20, s20, s3'); e('s_addc_u32 s21, s21, 0')
    e('s_lshl_b32 s22, s82, 14'); e('s_lshl_b32 s86, s82, 11')
    e(f's_mul_i32 s3, {sBLK}, {BS}'); e('s_lshl_b32 s77, s77, 11'); e('s_add_u32 s3, s3, s77')
    e('s_add_u32 s84, s16, s3'); e('s_addc_u32 s85, s17, 0')
    e(f's_lshl_b32 {sQ}, {sW}, 14')
    e(f'v_bfe_u32 {t0}, v0, 2, 2'); e(f'v_lshrrev_b32 {t1}, 5, v0'); e(f'v_lshl_add_u32 {t0}, {t1}, 2, {t0}')
    e(f'v_and_b32 {t1}, 1, v0'); e(f'v_lshlrev_b32 {t1}, 5, {t1}'); e(f'v_and_b32 {t2}, 16, v0'); e(f'v_and_b32 {t3}, 2, v0')
    e(f'v_lshl_add_u32 {t1}, {t3}, 2, {t1}'); e(f'v_add_u32 {t1}, {t1}, {t2}'); e(f'v_lshl_add_u32 {t1}, {t0}, 7, {t1}')
    e(f'v_bfe_u32 {t2}, v0, 3, 1'); e(f'v_xor_b32 {t2}, {sCG}, {t2}'); e(f'v_lshl_add_u32 {t1}, {t2}, 6, {t1}')
    e(f'v_add_u32 {v(vBR[0])}, {sQ}, {t1}'); e(f'v_xor_b32 {v(vBR[1])}, 64, {v(vBR[0])}')

def b_round(r, nsteps):
    base = L_X if r % 2 == 0 else L_W
    l = []
    for h in range(nsteps//2):
        l.append(I(f's_add_u32 m0, {sQ}, {base + h*4096}'))
        l.append(I(f's_mov_b32 {sBO}, {(8*r + 2*h)*16384}'))
        for q in range(4): l.append(I(f'buffer_load_dwordx4 {v(vBD[q])}, {BM}, {sBO} offen offset:{q*1024} lds', f'b{r}'))
    return l

def build_F(cs_ops, bias=None):
    t0, t1 = v(vT[0]), v(vT[1])
    l = list(cs_ops)
    l += [f'v_cvt_pk_bf16_f32 {t1}, {t0}, {t0}', f'v_and_b32 {t1}, 0xffff0000, {t1}', f'v_sub_f32 {t0}, {t0}, {t1}',
          f'v_cvt_pk_bf16_f32 {v(vF)}, {t1}, {t0}']
    if bias is not None: l.append(f'v_mov_b32 {v(vF+1)}, {v(bias)}')
    return l
CS_SM = [f'v_add_f32 {v(vT[0])}, {v(vCS)}, {v(vCS+1)}', f'v_mov_b32 {v(vCS)}, 0', f'v_mov_b32 {v(vCS+1)}, 0']

def stats_partial(vRS, vSQ, vSX, tmp):
    l = []
    l += [f'v_and_b32 {v(vT[2])}, 1, v0', f'v_cmp_eq_u32 vcc, 1, {v(vT[2])}', f'v_and_b32 {v(vT[2])}, 2, v0', f'v_cmp_eq_u32 {sMK}, 2, {v(vT[2])}']
    for sl in range(2):
        q0, q1 = vSQ[2*sl], vSQ[2*sl+1]
        l.append(f'v_add_f32 {v(tmp+2*sl)}, {v(vRS[sl])}, {v(vRS[sl]+1)}')
        for i in range(4): l.append(f'v_add_f32 {v(q0+i)}, {v(q0+i)}, {v(q1+i)}')
        l += [f'v_cndmask_b32 {v(q0)}, {v(q0)}, {v(q0+1)}, vcc', f'v_cndmask_b32 {v(q0+2)}, {v(q0+2)}, {v(q0+3)}, vcc',
              f'v_cndmask_b32 {v(q0)}, {v(q0)}, {v(q0+2)}, {sMK}', f'v_mov_b32 {v(q0+1)}, {v(q0)}']
    for sl in range(2):
        q0 = vSQ[2*sl]
        l += [f'v_permlane32_swap_b32 {v(q0)}, {v(q0+1)}']
    for sl in range(2):
        q0 = vSQ[2*sl]
        l += [f'v_add_f32 {v(tmp+2*sl+1)}, {v(q0)}, {v(q0+1)}']
    l.append(I(f'ds_write_b128 {v(vSX)}, {v(tmp, 4)}', 'st'))
    return l

def stats_scalars(S, Q, t, dst_m2, dst_dpk, dst_d, dst_r):
    return [f'v_mul_f32 {S}, {fl(1/512)}, {S}', f'v_mul_f32 {Q}, {fl(1/512)}, {Q}', f'v_fma_f32 {Q}, -{S}, {S}, {Q}', f'v_max_f32 {Q}, 0, {Q}',
            f'v_cvt_pk_bf16_f32 {dst_m2}, -{S}, -{S}', f'v_cvt_pk_bf16_f32 {t}, {Q}, {Q}', f'v_and_b32 {t}, 0xffff0000, {t}',
            f'v_add_f32 {t}, {fl(1e-5)}, {t}', f'v_cvt_pk_bf16_f32 {t}, {t}, {t}', f'v_and_b32 {t}, 0xffff0000, {t}',
            f'v_sqrt_f32 {t}, {t}', f'v_cvt_pk_bf16_f32 {dst_dpk}, {t}, 0', f'v_lshlrev_b32 {dst_d}, 16, {dst_dpk}', f'v_rcp_f32 {dst_r}, {dst_d}']

def zip2(x, y):
    o = []
    for i in range(max(len(x), len(y))):
        if i < len(x): o.append(x[i])
        if i < len(y): o.append(y[i])
    return o

def stats_final(vSX, tmp, tmp2, swapped, vD, vR):
    l = [f'v_xor_b32 {v(vSX)}, 2048, {v(vSX)}', f'ds_read_b128 {v(tmp2, 4)}, {v(vSX)}', f'v_cmp_gt_u32 vcc, 32, v0']
    for i in range(4): l.append(f'v_add_f32 {v(tmp+i)}, {v(tmp+i)}, {v(tmp2 + (i ^ 2 if swapped else i))}')
    l += zip2(*[stats_scalars(v(tmp+2*sl), v(tmp+2*sl+1), v(tmp2+sl), v(vTF[sl]), v(vTF[sl]+1), v(vD[sl]), v(vR[sl])) for sl in range(2)])
    for sl in range(2):
        for i in range(2): l.append(f'v_cndmask_b32 {v(vTF[sl]+i)}, 0, {v(vTF[sl]+i)}, vcc')
    return l

def build_spine(kinds, vXR, swapped, vXD, stats, single=None, halo=None, jobs_extra=None):
    D = cfg.D; nk = 32*len(kinds); NG = 8*len(kinds)
    def reads(k):
        if k >= nk: return []
        G, sl = k//4, k & 3; f = vWF + 4*(k % NF); l = []
        if kinds[k//32] == 'S':
            for h in range(2): l.append(I(f'ds_read_b64_tr_b16 {v(f+2*h, 2)}, {v(single[1][sl >> 1])} offset:{L_W + (G & 7)*8192 + (sl & 1)*1024 + h*256}'))
        else:
            for h in range(2): l.append(I(f'ds_read_b64_tr_b16 {v(f+2*h, 2)}, {v(vWR[sl >> 1])} offset:{L_W + (G & 7)*8192 + (sl & 1)*2048 + h*512}'))
        if k < 32:
            for u in range(2):
                ad = vXR[sl + 4*u] if swapped else vXR[sl]
                l.append(I(f'ds_read_b128 {a(128*u + 4*k, 4)}, {v(ad)} offset:{(G & 3)*16384 + (0 if swapped else u*4096)}'))
        if halo and k >= 32:
            l.append(I(f'ds_read_b128 {v(halo["f"] + 4*(k % halo["n"]), 4)}, {v(halo["ad"][sl >> 1])} offset:{(G & 7)*128 + (sl & 1)*32}'))
        return l
    def mkjob(G):
        if G >= NG: return []
        l = []
        if G % 8 == 0 and G > 0 and kinds[G//8] != 'S':
            l += [I(x) for x in jobs_extra(G//8)]
        return l + job(G, vXD, single[0] if kinds[G//8] == 'S' else None)
    def barrier(g):
        if g >= NG or (g > 10 and g % 2): return [], []
        tags = [f'c{g}'] + ([f'c{g+1}'] if g >= 10 else []) + (['st'] if g in (8, 9) else [])
        l = [I('@wait ' + ' '.join(tags)), I('s_barrier')]
        if g == 0: j = [I(f'v_mov_b32 {v(vT[0])}, 1'), I(f'buffer_store_dword {v(vT[0])}, off, {RDY}, 0 sc1')]
        elif 2 <= g <= 5: j = mkjob(g+2)
        elif g in (6, 7, 8): j = mkjob(2*g-4) + mkjob(2*g-3)
        elif g >= 10: j = mkjob(g+4) + mkjob(g+5) + b_round(0, 8)[3*(g-10):3*(g-10)+6]
        else: j = []
        return l, j
    pre, j0 = barrier(0); pre = pre + j0
    for k in range(D): pre += reads(k)
    groups = []; first = []; pend = []
    for k in range(nk):
        st = k//32; kk = k % 32; f = v(vWF + 4*(k % NF), 4); acc = vACC[st & 1]
        first.append(len(groups))
        if kk % 2 == 0 and not (halo and st > 0):
            groups.append([I(f'{SM} {v(vCS, 4)}, {v(vSEL, 4)}, {v(vWF + 4*(k % NF), 8)}, {v(vIDX)}')])
        if halo and st > 0:
            h = v(halo['f'] + 4*(k % halo['n']), 4); ha = v(halo['acc'], 4)
            groups.append([I(f'{M16} {ha}, {h}, {f}, {ha if kk else 0}')])
        ms = []
        for u in range(1 if kinds[st] == 'S' else 2):
            x = a(128*u + 4*kk, 4); d = v(acc[u], 16)
            ab = f'{x}, {f}' if kinds[st] == 'N' else f'{f}, {x}'
            ms.append(I(f'{M32} {d}, {ab}, {d if kk else 0}'))
        bar, jb = barrier((k + D)//4) if (k + D) % 4 == 0 else ([], [])
        pend += jb
        rd = reads(k + D)
        take = lambda n: [pend.pop(0) for _ in range(min(n, len(pend)))]
        per = 4 if st == 0 else 2
        if len(ms) == 2:
            h = (len(rd) + 1)//2
            groups.append([ms[0]] + bar + rd[:h] + take(per))
            groups.append([ms[1]] + rd[h:] + take(per))
        else:
            groups.append([ms[0]] + bar + rd + take(per))
        if st == 0 and kk % 4 == 1:
            vRS, vSQ = stats
            g = []
            for u in range(2): g.append(I(f'{SM} {v(vRS[u], 4)}, {v(vSEL, 4)}, {a(128*u + 4*(kk-1), 8)}, {v(vIDX)}'))
            for h in range(4):
                for u in range(2):
                    x = a(128*u + 4*(kk-1) + 2*h, 2); q = v(vSQ[2*u + (h & 1)], 4)
                    g.append(I(f'{M4} {q}, {x}, {x}, {q}'))
            groups.append(g)
    assert not pend
    first.append(len(groups))
    return pre, groups, first

def corr(st, kind, n=2):
    l = []
    for u in range(n):
        d = v(vACC[st & 1][u], 16); t = v(vTF[u], 4); f = v(vF, 4)
        l.append([I(f'{M32} {d}, {t}, {f}, {d}') if kind == 'N' else I(f'{M32} {d}, {f}, {t}, {d}')])
    return l

class Sched:
    def __init__(self, groups, first): self.g = groups; self.first = first
    def insert(self, k, newgroups):
        p = self.first[k]; self.g[p:p] = newgroups
        self.first = [x + len(newgroups) if i >= k else x for i, x in enumerate(self.first)]
    def fill(self, k0, k1, fillers, skip=0):
        self.g = interleave(self.g, fillers, self.first[k0] + skip, self.first[k1])
    def emit(self, s):
        for g in self.g:
            for i in g: s.e(i)

def gelu(acc, K1, K2, Dv, tmp, pk, regs, soff, packed):
    l = []
    for half in range(2):
        seqs = []
        for j in (2*half, 2*half+1):
            r = acc + 4*j; t = tmp + 4*(j & 1); q = []
            if packed:
                for i in (0, 2): q.append(f'v_pk_mul_f32 {v(t+i, 2)}, {v(r+i, 2)}, {v(r+i, 2)}')
                for i in (0, 2): q.append(f'v_pk_fma_f32 {v(t+i, 2)}, {v(t+i, 2)}, {v(K2, 2)}, {v(K1, 2)} op_sel_hi:[1,0,0]')
                for i in (0, 2): q.append(f'v_pk_mul_f32 {v(t+i, 2)}, {v(t+i, 2)}, {v(r+i, 2)}')
                for i in range(4): q.append(f'v_exp_f32 {v(t+i)}, {v(t+i)}')
                for i in (0, 2): q.append(f'v_pk_fma_f32 {v(t+i, 2)}, {v(t+i, 2)}, {v(Dv, 2)}, {v(Dv, 2)} op_sel_hi:[1,0,0]')
                for i in range(4): q.append(f'v_rcp_f32 {v(t+i)}, {v(t+i)}')
                for i in (0, 2): q.append(f'v_pk_mul_f32 {v(t+i, 2)}, {v(t+i, 2)}, {v(r+i, 2)}')
            else:
                for i in range(4): q.append(f'v_mul_f32 {v(t+i)}, {v(r+i)}, {v(r+i)}')
                for i in range(4): q.append(f'v_fma_f32 {v(t+i)}, {v(t+i)}, {v(K2)}, {v(K1)}')
                for i in range(4): q.append(f'v_mul_f32 {v(t+i)}, {v(t+i)}, {v(r+i)}')
                for i in range(4): q.append(f'v_exp_f32 {v(t+i)}, {v(t+i)}')
                for i in range(4): q.append(f'v_fma_f32 {v(t+i)}, {v(t+i)}, {v(Dv)}, {v(Dv)}')
                for i in range(4): q.append(f'v_rcp_f32 {v(t+i)}, {v(t+i)}')
                for i in range(4): q.append(f'v_mul_f32 {v(t+i)}, {v(t+i)}, {v(r+i)}')
            o = pk + 4*half + 2*(j & 1)
            for i in range(2): q.append(f'v_cvt_pk_bf16_f32 {v(o+i)}, {v(t+2*i)}, {v(t+2*i+1)}')
            seqs.append(q)
        l += zip2(*seqs) if packed else seqs[0] + seqs[1]
        l.append(I(f'buffer_store_dwordx4 {v(pk + 4*half, 4)}, {v(vL16)}, {WS}, {soff} offen offset:{2048*half} sc1', 'h'))
    return l

def ffn(s):
    e = s.e; al = Alloc(COMMON_END)
    vXD = [al() for _ in range(4)]; vXR = [al() for _ in range(8)]
    vSD = al(); vSR = [al(), al()]; vB1 = [al() for _ in range(4)]; vSX = al()
    vK1 = [al(2, 2), al(2, 2)]; vK2 = [al(2, 2), al(2, 2)]; vD = [al(2, 2), al(2, 2)]; vR = [al(), al()]
    vRS = [al(4, 2), al(4, 2)]; vSQ = [al(4, 2) for _ in range(4)]
    vG = al(8, 2); vPK = al(8, 4); vS4 = al(4, 2); vS5 = al(4, 2)
    e(f's_mul_i32 s91, {sN}, 448'); e(f's_and_b32 s3, {sN}, 1'); e('s_lshl_b32 s99, s3, 6'); e('s_add_u32 s99, s99, s91')
    e('s_cmp_eq_u32 s3, 0'); e('s_cselect_b32 s3, 384, 0'); e('s_add_u32 s91, s91, s3')
    e('s_mov_b32 s14, 1835008')
    xw_setup(s, 3584, vXD, 's99')
    start_loads(s, vXD)
    read_setup(s, vXR, True)
    t0, t1, t2, t3 = [v(x) for x in vT[:4]]
    e(f'v_lshl_add_u32 {v(vSR[0])}, {t2}, 6, {t3}'); e(f's_lshl_b32 s77, {sCG}, 11'); e(f'v_add_u32 {v(vSR[0])}, s77, {v(vSR[0])}')
    e(f'v_xor_b32 {v(vSR[1])}, 2048, {v(vSR[0])}')
    for G in (2, 3):
        for i in job(G, vXD): e(i)
    e(f'v_lshrrev_b32 {t0}, 2, v0'); e(f'v_and_b32 {t1}, 3, v0'); e(f'v_lshlrev_b32 {t1}, 4, {t1}')
    e(f's_mul_i32 s77, {sW}, {16*3584}'); e('s_add_u32 s77, s77, s91')
    e(f'v_mul_u32_u24 {v(vSD)}, 3584, {t0}'); e(f'v_add3_u32 {v(vSD)}, {v(vSD)}, {t1}, s77')
    e(f'v_and_b32 {t0}, 31, v0'); e(f'v_lshlrev_b32 {t0}, 1, {t0}')
    e(f's_lshl_b32 s77, {sCG}, 6'); e('s_add_u32 s77, s77, s99')
    for st in range(3): e(f'buffer_load_ushort {v(vB1[st])}, {t0}, {B1}, s77 offen offset:{128*st}')
    e(f'buffer_load_ushort {v(vB1[3])}, {t0}, {B1}, s91 offen')
    e('s_lshl_b32 s77, s77, 6'); e(f's_lshl_b32 s82, {sP}, 10'); e('s_add_u32 s82, s82, 65536')
    e(f's_lshl_b32 s3, {sMT}, 1'); e(f's_add_u32 s3, s3, {sCG}')
    e(f's_mul_i32 {sST[0]}, s3, {BS}'); e('s_xor_b32 s3, s3, 1'); e(f's_mul_i32 {sST[1]}, s3, {BS}')
    e(f's_add_u32 {sST[0]}, {sST[0]}, s82'); e(f's_add_u32 {sST[1]}, {sST[1]}, s82')
    e('s_lshl_b32 s91, s91, 6'); e(f's_add_u32 s91, s91, {sST[0]}')
    e(f's_add_u32 {sST[0]}, {sST[0]}, s77'); e(f's_add_u32 {sST[1]}, {sST[1]}, s77')
    e(f's_lshl_b32 {sFL}, {sMT}, 4'); e(f's_add_u32 {sFL}, {sFL}, {sN}')
    e(f'v_add_u32 {v(vSX)}, {sSL}, {v(vL16)}'); e(f'v_add_u32 {v(vSX)}, {L_ST}, {v(vSX)}')
    for r in vRS + vSQ:
        for i in range(4): e(f'v_mov_b32 {v(r+i)}, 0')
    p2_setup(s)
    stamp(s, 0)
    extra = lambda st: [f'v_add_u32 {v(vWD[q])}, 128, {v(vWD[q])}' for q in range(2)]
    pre, groups, first = build_spine('TTTS', vXR, True, vXD, (vRS, vSQ), single=(vSD, vSR), jobs_extra=extra)
    S = Sched(groups, first)
    KC = 38
    S.insert(128, corr(3, 'T', 1)); S.insert(96, corr(2, 'T')); S.insert(64, corr(1, 'T')); S.insert(KC, corr(0, 'T'))
    def before(k, n): return S.first[k] - n
    bar9 = 36 - cfg.D
    fin = stats_final(vSX, vS4, vS5, True, vD, vR)
    for u in range(2):
        c1 = -2*LOG2E*math.sqrt(2/math.pi)
        fin += [f'v_mul_f32 {v(vK1[u])}, {fl(c1)}, {v(vR[u])}', f'v_mul_f32 {v(vR[u])}, {v(vR[u])}, {v(vR[u])}',
                f'v_mul_f32 {v(vK2[u])}, {fl(0.044715)}, {v(vK1[u])}', f'v_mul_f32 {v(vK2[u])}, {v(vK2[u])}, {v(vR[u])}']
    S.g = interleave(S.g, build_F(CS_SM, vB1[0]), S.first[31], S.first[32])
    S.g = interleave(S.g, stats_partial(vRS, vSQ, vSX, vS4), S.first[30] + 1, S.first[bar9])
    S.g = interleave(S.g, fin, S.first[bar9] + 1 + (bar9 % 2 == 0), before(KC, 2))
    for st in (1, 2, 3):
        n = 1 if st == 3 else 2
        S.g = interleave(S.g, build_F(CS_SM, vB1[st]), S.first[32*st+31], before(32*st+32, n))
    S.fill(70, 72, [I(f'buffer_load_dword {v(vRDY)}, off, {DBG}, 0 sc1')])
    for st in range(3):
        gl = []
        for u in range(2):
            gl += gelu(vACC[st & 1][u], vK1[u], vK2[u], vD[u], vG, vPK, None, sST[u], False)
            gl.append(f's_add_u32 {sST[u]}, {sST[u]}, 8192')
        k0 = KC if st == 0 else 32*st + 32
        S.fill(k0, 32*st + 63, gl, skip=2)
    for i in pre: e(i)
    stamp(s, 1)
    if cfg.stamps:
        for k, n in ((32, 2), (64, 3), (96, 4)): S.g[S.first[k]] = S.g[S.first[k]] + [('stamp', n)]
        for g in S.g:
            for i in g:
                if isinstance(i, tuple): stamp(s, i[1])
                else: e(i)
    else: S.emit(s)
    stamp(s, 5)
    e('s_barrier')
    for i in gelu(vACC[1][0], vK1[0], vK2[0], vD[0], vG, vPK, None, 's91', True): e(i)
    stamp(s, 6)
    return phase2(s, 'f')

def att(s):
    e = s.e; al = Alloc(COMMON_END)
    NH = 4
    vHR = [al(), al()]; vSX = al(); vD = [al(), al()]; vRC = [al(), al()]; vKHA = al(); vTA = al()
    vHF = al(4*NH, 2); vHA = vCS
    vQ = [al(8, 2), al(8, 2)]; vK = [al(8, 2), al(8, 2)]; vKH = [al(4, 2), al(4, 2)]
    vMK = al(24, 2); vAM = al(10, 2); vRK = [al(4), al(4)]; vPP = al(8, 2); vE = al(8, 2)
    vXD = [vK[0] + i for i in range(4)]; vXR = [vK[0] + 4 + i for i in range(4)]
    vRS = [vK[1], vK[1] + 4]; vSQ = [vKH[0], vKH[1], vPP, vPP + 4]; vS4 = vE; vS5 = vE + 4
    e('L_att:')
    e(f's_lshl_b32 s99, {sN}, 7'); e('s_mov_b32 s14, 1572864')
    xw_setup(s, 3072, vXD, 's99')
    e('s_waitcnt lgkmcnt(0)'); e('s_mov_b32 s12, s78'); e('s_mov_b32 s13, s79')
    start_loads(s, vXD)
    t0, t1, t2, t3 = [v(x) for x in vT[:4]]
    hx = vACC[1][1]
    e(f's_lshl_b32 s77, {sMT}, 7'); e(f's_lshl_b32 s82, {sCG}, 3'); e('s_add_u32 s77, s77, s82'); e(f's_add_u32 s77, s77, {sP}'); e('s_sub_u32 s77, s77, 16'); e('s_lshl_b32 s77, s77, 10')
    e(f'v_lshrrev_b32 {t0}, 4, v0'); e(f'v_and_b32 {t1}, 15, v0'); e(f'v_lshlrev_b32 {t1}, 4, {t1}')
    e(f'v_lshl_add_u32 {t2}, {t0}, 11, {t1}'); e(f'v_add_u32 {t2}, s77, {t2}')
    for i in range(4): e(f'buffer_load_dwordx4 {v(hx + 4*i, 4)}, {t2}, {X}, 0 offen offset:{256*i}')
    read_setup(s, vXR, False)
    for G in (2, 3):
        for i in job(G, vXD): e(i)
    e(f'v_bfe_u32 {t0}, v0, 3, 1'); e(f'v_and_b32 {t1}, 3, v0'); e(f'v_lshl_add_u32 {t0}, {t0}, 2, {t1}')
    e(f's_lshl_b32 s77, {sP}, 3'); e(f'v_add_u32 {t0}, s77, {t0}')
    e(f'v_bfe_u32 {t1}, v0, 4, 1'); e(f'v_bfe_u32 {t2}, v0, 2, 1'); e(f'v_cmp_eq_u32 vcc, {t1}, {t2}')
    e(f'v_cndmask_b32 {t0}, 16, {t0}, vcc'); e(f'v_mul_u32_u24 {t0}, {HROW}, {t0}')
    e(f'v_lshrrev_b32 {t1}, 5, v0'); e(f'v_lshl_add_u32 {t0}, {t1}, 4, {t0}')
    e(f's_lshl_b32 s77, {sCG}, 6'); e(f's_add_u32 s82, s77, {L_H}'); e(f'v_add_u32 {v(vHR[0])}, s82, {t0}')
    e(f's_sub_u32 s82, {L_H + 64}, s77'); e(f'v_add_u32 {v(vHR[1])}, s82, {t0}')
    z = vACC[1][0]
    e(f'v_add_u32 {t0}, {L_H + 16*HROW}, {v(vL16)}'); e(I(f'ds_write_b128 {t0}, {v(z, 4)}', 'st'))
    e(f'v_and_b32 {t0}, 31, v0'); e(f'v_lshlrev_b32 {t1}, 2, {t1}'); e(f'v_sub_u32 {t1}, {t0}, {t1}'); e(f'v_mov_b32 {t3}, {fl(NEG)}')
    e(f's_lshl_b32 s77, {sW}, 9'); e(f's_add_u32 s82, s77, {L_R + 32}')
    e(f'v_lshl_add_u32 {v(vTA)}, {t0}, 2, s82')
    e(f's_cmp_eq_u32 {sMT}, 0'); e(f's_cselect_b32 s3, {fl(NEG)}, 0')
    e(f'v_mov_b32 {v(vT[4])}, 0xffff'); e(f'v_mov_b32 {v(vT[5])}, 0xffff0000')
    for i in range(4):
        e(f'v_subrev_u32 {t2}, {i}, {t1}')
        e(f'v_and_b32 {v(vRK[0]+i)}, 7, {t2}'); e(f'v_lshlrev_b32 {v(vRK[0]+i)}, 2, {v(vRK[0]+i)}'); e(f'v_sub_u32 {v(vRK[0]+i)}, {v(vTA)}, {v(vRK[0]+i)}')
        e(f'v_ashrrev_i32 {t2}, 3, {t2}')
        for j in range(-1, 4):
            e(f'v_cmp_eq_u32 vcc, {j}, {t2}')
            m = vMK + (16 + i if j < 0 else 4*j + i); am = vAM + 2*(j+1) + (i >> 1)
            e(f'v_cndmask_b32 {v(m)}, {t3}, {v(z)}, vcc')
            if i % 2 == 0: e(f'v_cndmask_b32 {v(am)}, 0, {v(vT[4])}, vcc')
            else:
                e(f'v_cndmask_b32 {v(vT[6])}, 0, {v(vT[5])}, vcc'); e(f'v_or_b32 {v(am)}, {v(am)}, {v(vT[6])}')
        e(f'v_min_f32 {v(vMK+20+i)}, s3, {v(vMK+16+i)}')
    e(f'v_mov_b32 {t2}, 1.0'); e(f'v_subrev_u32 {t3}, 32, {v(vTA)}'); e(f'ds_write_b32 {t3}, {t2}')
    e(f's_add_u32 s82, s77, {L_KH}')
    e(f'v_lshrrev_b32 {t1}, 5, v0'); e(f'v_lshlrev_b32 {t2}, 1, {t0}'); e(f'v_lshl_add_u32 {t2}, {t1}, 8, {t2}'); e(f'v_add_u32 {v(vKHA)}, s82, {t2}')
    e(f's_mov_b32 s91, s82')
    e(f's_lshl_b32 s77, {sN}, 13'); e(f's_lshl_b32 s82, {sCG}, 12'); e('s_add_u32 s77, s77, s82'); e(f's_lshl_b32 s82, {sP}, 10'); e('s_add_u32 s77, s77, s82')
    e(f's_mul_i32 {sST[0]}, {sMT}, {2*BS}'); e(f's_add_u32 {sST[0]}, {sST[0]}, s77'); e(f's_add_u32 {sST[1]}, {sST[0]}, {BS}')
    e(f's_lshl_b32 {sFL}, {sMT}, 4'); e(f's_add_u32 {sFL}, {sFL}, {sN}'); e(f's_add_u32 {sFL}, {sFL}, 8')
    e(f'v_add_u32 {v(vSX)}, {sSL}, {v(vL16)}'); e(f'v_add_u32 {v(vSX)}, {L_ST}, {v(vSX)}')
    for r in vRS + vSQ:
        for i in range(4): e(f'v_mov_b32 {v(r+i)}, 0')
    p2_setup(s)
    S_, Q_, one = v(vT[0]), v(vT[1]), v(vT[2])
    e(f'v_mov_b32 {one}, 0x3f803f80'); e(f'v_mov_b32 {S_}, 0'); e(f'v_mov_b32 {Q_}, 0')
    for i in range(16):
        e(f'v_dot2c_f32_bf16 {S_}, {v(hx+i)}, {one}'); e(f'v_dot2c_f32_bf16 {Q_}, {v(hx+i)}, {v(hx+i)}')
    for r in (8, 4, 2, 1):
        e(f'v_add_f32_dpp {S_}, {S_}, {S_} row_ror:{r} row_mask:0xf bank_mask:0xf')
        e(f'v_add_f32_dpp {Q_}, {Q_}, {Q_} row_ror:{r} row_mask:0xf bank_mask:0xf')
    hr, hb = vHF, vHF + 2
    for i in stats_scalars(S_, Q_, v(vT[3]), v(hb), v(vT[4]), v(vT[5]), v(hr)): e(i)
    e(f'v_and_b32 {v(hb)}, 0xffff0000, {v(hb)}'); e(f'v_mul_f32 {v(hb)}, {v(hb)}, {v(hr)}')
    e(f'v_lshrrev_b32 {t0}, 4, v0'); e(f's_lshl_b32 s77, {sCG}, 2'); e(f'v_add_u32 {t0}, s77, {t0}'); e(f'v_cmp_eq_u32 vcc, 0, {t0}')
    e(f'v_cndmask_b32 {v(hr)}, {v(hr)}, {v(z)}, vcc'); e(f'v_mov_b32 {t1}, 1.0'); e(f'v_cndmask_b32 {v(hb)}, {v(hb)}, {t1}, vcc')
    e(f's_lshl_b32 s77, {sP}, 3'); e(f'v_add_u32 {t0}, s77, {t0}'); e(f'v_mul_u32_u24 {t0}, {HROW}, {t0}'); e(f'v_add_u32 {t0}, {L_H}, {t0}')
    e(f'v_and_b32 {t1}, 15, v0'); e(f'v_lshlrev_b32 {t1}, 4, {t1}'); e(f'v_subrev_u32 {t1}, {sXO[0]}, {t1}')
    u0 = vHF + 4
    for i in range(4):
        for k in range(4):
            r = hx + 4*i + k
            e(f'v_lshlrev_b32 {v(u0+2*k)}, 16, {v(r)}'); e(f'v_and_b32 {v(u0+2*k+1)}, 0xffff0000, {v(r)}')
        for k in range(4): e(f'v_pk_fma_f32 {v(u0+2*k, 2)}, {v(u0+2*k, 2)}, {v(hr, 2)}, {v(hb, 2)} op_sel_hi:[1,0,0]')
        for k in range(4): e(f'v_cvt_pk_bf16_f32 {v(hx+4*i+k)}, {v(u0+2*k)}, {v(u0+2*k+1)}')
        e(f'v_add_u32 {t2}, {256*i}, {t1}'); e(f'v_and_b32 {t2}, 1023, {t2}'); e(f'v_add_u32 {t2}, {t0}, {t2}')
        e(I(f'ds_write_b128 {t2}, {v(hx+4*i, 4)}', 'st'))
    stamp(s, 0)
    extra = lambda st: [f'v_add_u32 {v(vWD[q])}, 1024, {v(vWD[q])}' for q in range(2)]
    halo = dict(f=vHF, n=NH, ad=vHR, acc=vHA)
    pre, groups, first = build_spine('TTN', vXR, False, vXD, (vRS, vSQ), halo=halo, jobs_extra=extra)
    S = Sched(groups, first)
    KC = 38
    sc, sp = vACC[1][0], vACC[1][1]
    KS = [68, 71, 81, 84]
    S.insert(96, corr(2, 'N'))
    for n in (3, 2, 1, 0):
        u, hd = n >> 1, n & 1
        q = v(vQ[u] + 4*hd, 4); kp = v(vK[0] + 4*hd, 4) if u else v(vKH[hd], 4)
        S.insert(KS[n], [[I(f'{M32} {v(sc, 16)}, {v(vK[u] + 4*hd, 4)}, {q}, {v(vMK, 16)}')],
                         [I(f'{M32} {v(sp, 16)}, {kp}, {q}, {v(vMK + (4 if u else 8), 16)}')]])
    S.insert(64, corr(1, 'T')); S.insert(KC, corr(0, 'T'))
    def before(k, n): return S.first[k] - n
    bar9 = 36 - cfg.D
    fin = stats_final(vSX, vS4, vS5, False, vD, vRC)
    S.g = interleave(S.g, build_F(CS_SM), S.first[31], S.first[32])
    S.g = interleave(S.g, stats_partial(vRS, vSQ, vSX, vS4), S.first[30] + 1, S.first[bar9])
    S.g = interleave(S.g, fin, S.first[bar9] + 2, before(KC, 2))
    l = [f'ds_write_b32 {v(vTA)}, {v(vRC[0])}', f'ds_write_b32 {v(vTA)}, {v(vRC[1])} offset:128']
    for u in range(2): l.append(f'v_mul_f32 {v(vRC[u])}, {fl(0.25*LOG2E)}, {v(vRC[u])}')
    for u in (1, 0):
        for i in range(4): l.append(f'ds_read_b32 {v(vRK[u]+i)}, {v(vRK[0]+i)} offset:{128*u}')
    for u in range(2):
        for i in range(8): l.append(f'v_cvt_pk_bf16_f32 {v(vQ[u]+i)}, {v(vACC[0][u]+2*i)}, {v(vACC[0][u]+2*i+1)}')
    for u in range(2):
        for i in range(4): l.append(f'v_mul_f32 {v(vRK[u]+i)}, {v(vRK[u]+i)}, {v(vRC[u])}')
    S.fill(KC, 50, l, skip=3)
    S.fill(56, 58, [I(f'buffer_load_dword {v(vRDY)}, off, {DBG}, 0 sc1')])
    cs_h = [f'v_mov_b32 {v(vT[0])}, {v(vHA)}']
    kh = [f'v_cvt_pk_bf16_f32 {v(vE)}, {v(vHA)}, {v(vHA+1)}', f'v_cvt_pk_bf16_f32 {v(vE+1)}, {v(vHA+2)}, {v(vHA+3)}']
    S.g = interleave(S.g, build_F(cs_h) + kh, S.first[63] + 2, before(64, 2))
    vVH = vE + 4
    vh = [f'v_cvt_pk_bf16_f32 {v(vVH+2)}, {v(vHA)}, {v(vHA+1)}', f'v_cvt_pk_bf16_f32 {v(vVH+3)}, {v(vHA+2)}, {v(vHA+3)}',
          f'v_mov_b32 {v(vVH)}, 0', f'v_mov_b32 {v(vVH+1)}, 0']
    S.g = interleave(S.g, build_F(cs_h) + vh, S.first[95] + 2, before(96, 2))
    l = [f'ds_write_b16 {v(vKHA)}, {v(vE)}', f'ds_write_b16_d16_hi {v(vKHA)}, {v(vE)} offset:64',
         f'ds_write_b16 {v(vKHA)}, {v(vE+1)} offset:128', f'ds_write_b16_d16_hi {v(vKHA)}, {v(vE+1)} offset:192',
         f'v_and_b32 {t2}, 7, v0', f'v_lshrrev_b32 {t3}, 5, v0', f'v_lshlrev_b32 {t3}, 3, {t3}', f'v_lshl_add_u32 {t2}, {t2}, 6, {t3}', f'v_add_u32 {t2}, s91, {t2}',
         f'ds_read2_b64 {v(vKH[0], 4)}, {t2} offset0:0 offset1:2', f'ds_read2_b64 {v(vKH[1], 4)}, {t2} offset0:4 offset1:6']
    for u in range(2):
        for i in range(8): l.append(f'v_cvt_pk_bf16_f32 {v(vK[u]+i)}, {v(vACC[1][u]+2*i)}, {v(vACC[1][u]+2*i+1)}')
    S.g = interleave(S.g, l, S.first[64], before(KS[0], 2))
    mA, mB, mC = v(vT[2]), v(vT[3]), v(vT[4])
    for u in range(2):
        def merge(hd):
            q = []
            for i in range(4): q.append(f'v_max3_f32 {v(vE+4*hd+i)}, {v(sc+i)}, {v(sc+4+i)}, {v(sc+8+i)}')
            for i in range(4): q.append(f'v_max3_f32 {v(vE+4*hd+i)}, {v(vE+4*hd+i)}, {v(sc+12+i)}, {v(sp+12+i)}')
            return q
        S.g = interleave(S.g, merge(0), S.first[KS[2*u]] + 3, before(KS[2*u+1], 2))
        l = merge(1)
        for n in range(8): l.append(f'v_mul_f32 {v(vE+n)}, {v(vE+n)}, {v(vRK[u] + (n & 3))}')
        l += [f'v_max3_f32 {mA}, {v(vE)}, {v(vE+1)}, {v(vE+2)}', f'v_max3_f32 {mB}, {v(vE+4)}, {v(vE+5)}, {v(vE+6)}',
              f'v_max_f32 {mA}, {mA}, {v(vE+3)}', f'v_max_f32 {mB}, {mB}, {v(vE+7)}',
              f'v_permlane32_swap_b32 {mA}, {mB}', f'v_max_f32 {mB}, {mA}, {mB}', f'v_mov_b32 {mA}, {mB}', f'v_permlane32_swap_b32 {mA}, {mB}']
        for n in range(8): l.append(f'v_sub_f32 {v(vE+n)}, {v(vE+n)}, {mA if n < 4 else mB}')
        for n in range(8): l.append(f'v_exp_f32 {v(vE+n)}, {v(vE+n)}')
        l += [f'v_add_f32 {mA}, {v(vE)}, {v(vE+1)}', f'v_add_f32 {mB}, {v(vE+4)}, {v(vE+5)}', f'v_add_f32 {mA}, {mA}, {v(vE+2)}', f'v_add_f32 {mB}, {mB}, {v(vE+6)}',
              f'v_add_f32 {mA}, {mA}, {v(vE+3)}', f'v_add_f32 {mB}, {mB}, {v(vE+7)}']
        for n in range(4): l.append(f'v_mul_f32 {v(vE+n)}, {v(vE+n)}, {v(vRK[u] + n)}')
        l += [f'v_permlane32_swap_b32 {mA}, {mB}', f'v_add_f32 {mB}, {mA}, {mB}', f'v_mul_f32 {mB}, {mB}, {v(vRC[u])}', f'v_rcp_f32 {mB}, {mB}']
        for n in range(4, 8): l.append(f'v_mul_f32 {v(vE+n)}, {v(vE+n)}, {v(vRK[u] + (n & 3))}')
        l += [f'v_mov_b32 {mA}, {mB}', f'v_permlane32_swap_b32 {mA}, {mB}']
        for n in range(8): l.append(f'v_mul_f32 {v(vE+n)}, {v(vE+n)}, {mA if n < 4 else mB}')
        for n in range(4): l.append(f'v_cvt_pk_bf16_f32 {v(vPP+4*u+n)}, {v(vE+2*n)}, {v(vE+2*n+1)}')
        S.g = interleave(S.g, l, S.first[KS[2*u+1]] + 3, before(KS[2], 2) if u == 0 else S.first[95])
    for i in pre: e(i)
    stamp(s, 1)
    if cfg.stamps:
        for k, n in ((32, 2), (64, 3)): S.g[S.first[k]] = S.g[S.first[k]] + [('stamp', n)]
        for g in S.g:
            for i in g:
                if isinstance(i, tuple): stamp(s, i[1])
                else: e(i)
    else: S.emit(s)
    stamp(s, 5)
    e('s_barrier')
    pe = [vWF, vWF + 12]
    def expand(n):
        b = pe[n & 1]; q = []
        if n < 2: q += [f'v_mov_b32 {v(b)}, 0', f'v_mov_b32 {v(b+1)}, 0']
        for m in range(10): q.append(f'v_and_b32 {v(b+2+m)}, {v(vPP + 2*n + (m & 1))}, {v(vAM+m)}')
        return q
    for i in expand(0) + expand(1): e(i)
    for u in range(2):
        for i in range(8): e(f'v_cvt_pk_bf16_f32 {v(vQ[u]+i)}, {v(vACC[0][u]+2*i)}, {v(vACC[0][u]+2*i+1)}')
    od = [vACC[1][0], vACC[1][1], vACC[0][0], vACC[0][1]]
    def pv(n):
        u = n >> 1; b = pe[n & 1]; d = v(od[n], 16)
        prev = v(vQ[0] + 4, 4) if u else v(vVH, 4)
        return [[I(f'{M32} {d}, {prev}, {v(b, 4)}, 0')], [I(f'{M32} {d}, {v(vQ[u], 4)}, {v(b+4, 4)}, {d}')], [I(f'{M32} {d}, {v(vQ[u]+4, 4)}, {v(b+8, 4)}, {d}')]]
    def ostore(n):
        u, hd = n >> 1, n & 1; o = vK[0] + 4*n; o += (-o) % 2
        q = [f'v_cvt_pk_bf16_f32 {v(o+i)}, {v(od[n] + 8*hd + 2*i)}, {v(od[n] + 8*hd + 2*i + 1)}' for i in range(4)]
        return q + [I(f'buffer_store_dwordx4 {v(o, 4)}, {v(vL16)}, {WS}, {sST[u]} offen offset:{2048*hd} sc1', 'h')]
    gs = pv(0) + interleave(pv(1), expand(2)) + interleave(pv(2), expand(3) + ostore(0)) + interleave(pv(3), ostore(1))
    for g in gs:
        for i in g: e(i)
    for i in ostore(2) + ostore(3): e(i)
    stamp(s, 6)
    return phase2(s, 'a')

def phase2(s, pfx):
    e = s.e; al = Alloc(vIDX)
    vA = [al(), al()]; vRA = [al() for _ in range(3)]; vOA = al(); vWA = al()
    acc = [al(16, 2) for _ in range(4)]
    vX = al(8, 2); vB2 = al(16, 2); vBV = al(48, 2)
    NA = cfg.AD + 1
    vAR = al(8*NA, 2); vS = al(16, 2)
    t0, t1, t2, t3 = [v(x) for x in vT[:4]]
    def breg(k, b, h=None):
        i = 8*k + 4*b; f, i = (a, i) if i < 256 else (v, vBV + i - 256)
        return f(i, 4) if h is None else f(i + 2*h, 2)
    def b_move(r, n):
        base = L_X if r % 2 == 0 else L_W
        l = [I(f'@wait b{r}')]
        if base: l += [I(f'v_add_u32 {v(vT[4+b])}, {base}, {v(vBR[b])}') for b in range(2)]
        for k in range(n):
            for b in range(2):
                ad = vT[4+b] if base else vBR[b]
                for h in range(2): l.append(I(f'ds_read_b64_tr_b16 {breg(8*r+k, b, h)}, {v(ad)} offset:{k*2048 + h*1024}', f'm{r}'))
        return l
    for i in b_round(1, 8): e(i)
    for i in b_move(0, 8): e(i)
    e('@wait h')
    e(f'v_readfirstlane_b32 s3, {v(vRDY)}'); e('s_cmp_lg_u32 s3, 0'); e(f's_cbranch_scc1 L_{pfx}_rdy')
    e(f's_mov_b32 s82, {cfg.spin}')
    keep = list(s.vm)
    e(f'L_{pfx}_rspin:')
    e(f'buffer_load_dword {v(vRDY)}, off, {DBG}, 0 sc1')
    e('s_sub_u32 s82, s82, 1'); e(f's_cbranch_scc1 L_{pfx}_rdy')
    e(f'v_readfirstlane_b32 s3, {v(vRDY)}'); e('s_cmp_eq_u32 s3, 0'); e(f's_cbranch_scc1 L_{pfx}_rspin')
    e(f'L_{pfx}_rdy:')
    s.vm = keep
    e(f's_lshl_b32 {sFL}, {sFL}, 8'); e(f's_lshl_b32 s3, {sW}, 2'); e(f's_add_u32 {sFL}, {sFL}, s3'); e(f's_add_u32 {sFL}, {sFL}, {FLAG}')
    e(f'v_mov_b32 {t0}, 1'); e('s_mov_b64 exec, 1')
    e(f'buffer_store_dword {t0}, off, {WS}, {sFL} sc1')
    e('s_mov_b64 exec, -1')
    stamp(s, 7)
    e('@wait m0')
    for i in b_round(2, 8): e(i)
    e(f's_lshl_b32 s3, {sP}, 10'); e(f'v_add_u32 {v(vA[0])}, s3, {v(vL16)}'); e(f'v_xor_b32 {v(vA[1])}, 1024, {v(vA[0])}')
    e(f's_lshl_b32 s3, {sNT}, 7'); e(f's_lshl_b32 s77, {sCG}, 6'); e('s_add_u32 s3, s3, s77')
    e(f'v_and_b32 {t0}, 32, v0'); e(f'v_add_u32 {t0}, s3, {t0}')
    e(f's_lshl_b32 s77, {sBLK}, 6'); e(f's_add_u32 s77, s77, {sP}'); e('s_lshl_b32 s77, s77, 10')
    e(f'v_and_b32 {t1}, 31, v0'); e(f'v_lshlrev_b32 {t1}, 11, {t1}'); e(f'v_add3_u32 {v(vOA)}, {t0}, {t1}, s77')
    for h in range(2): e(f'buffer_load_dwordx4 {v(vS + 4*h, 4)}, {t0}, {B2}, 0 offen offset:{16*h}')
    for h in range(2): e(f'buffer_load_dwordx4 {v(vX + 4*h, 4)}, {v(vOA)}, {X}, 0 offen offset:{16*h}')
    e(f's_add_u32 s3, {sQ}, {L_X}'); e(f'v_add_u32 {v(vWA)}, s3, {v(vL16)}')
    for i in range(3):
        e(f's_cmp_gt_u32 {sW}, {i}'); e(f's_cselect_b32 s3, {i}, {i+1}'); e(f's_xor_b32 s77, s3, {sW}'); e('s_lshl_b32 s77, s77, 12')
        e('s_lshl_b32 s3, s3, 14'); e('s_add_u32 s3, s3, s77'); e(f's_add_u32 s3, s3, {L_X - 4096}'); e(f'v_add_u32 {v(vRA[i])}, s3, {v(vL16)}')
    for i in b_move(1, 8): e(i)
    e('@wait m1')
    for i in b_round(3, 8): e(i)
    for i in b_move(2, 8): e(i)
    for i in range(8):
        e(f'v_lshlrev_b32 {v(vB2+2*i)}, 16, {v(vS+i)}'); e(f'v_and_b32 {v(vB2+2*i+1)}, 0xffff0000, {v(vS+i)}')
    e(f's_lshr_b32 s3, {sBLK}, 1'); e('s_lshl_b32 s3, s3, 12'); e(f's_add_u32 s91, s3, {FLAG}')
    e(f'v_lshrrev_b32 {t2}, 2, v0'); e(f'v_and_b32 {t3}, 3, v0'); e(f'v_lshlrev_b32 {t3}, 2, {t3}'); e(f'v_lshl_add_u32 {t2}, {t2}, 8, {t3}')
    e(f's_cmp_eq_u32 {sW}, 2'); e('s_mov_b32 s92, 0xfff'); e('s_cselect_b32 s92, 0xffff00, s92'); e(f's_cmp_eq_u32 {sW}, 3'); e('s_cselect_b32 s92, 0xfff00000, s92'); e('s_mov_b32 s93, 0')
    e(f's_cmp_eq_u32 {sW}, 0'); e(f's_cbranch_scc1 L_{pfx}_w0')
    s0 = s.fork()
    outs = [s, s0]
    for w0, z in ((False, s), (True, s0)):
        e = z.e; ns = 32 if w0 else 38; lb = f'L_{pfx}{int(w0)}'
        if w0:
            e(f'L_{pfx}_w0:'); e('s_mov_b32 s92, 0'); e('s_mov_b32 s93, -1')
            for i in b_move(3, 8): e(i)
        else:
            e('@wait m2')
            for i in b_round(4, 6): e(i)
            for i in b_move(3, 8): e(i)
            for i in b_move(4, 6): e(i)
        stamp(z, 8)
        e(f's_mov_b64 exec, {sMK}'); e(f's_mov_b32 s82, {cfg.spin}')
        e(f'{lb}_poll:')
        e(f'buffer_load_dword {t3}, {t2}, {WS}, s91 offen sc1')
        e('s_sub_u32 s82, s82, 1'); e(f's_cbranch_scc1 {lb}_go')
        e(f'v_cmp_ne_u32 vcc, 1, {t3}'); e(f's_cbranch_vccnz {lb}_poll')
        e(f'{lb}_go:')
        e('s_mov_b64 exec, -1')
        stamp(z, 9)
        def aload(k):
            if k >= ns: return []
            l = [I(f's_mov_b32 {sAO}, {k*2048}')] if k % 2 == 0 else []
            for u in range(2): l.append(I(f'buffer_load_dwordx4 {v(vAR + 8*(k % NA) + 4*u, 4)}, {v(vA[u])}, {AS}, {sAO} offen offset:{(k & 1)*2048} sc1'))
            return l
        for k in range(cfg.AD):
            for i in aload(k): e(i)
        for k in range(ns):
            ld = aload(k + cfg.AD)
            order = (1, 3, 2, 0) if k == ns - 1 else (0, 2, 1, 3)
            for n, sl in enumerate(order):
                u, b = sl & 1, sl >> 1; d = v(acc[sl], 16)
                dd = v(vS, 16) if (w0 and k == ns - 1 and sl == 0) else d
                e(f'{M32} {dd}, {breg(k, b)}, {v(vAR + 8*(k % NA) + 4*u, 4)}, {d if k else 0}')
                if n == 0:
                    for i in ld[:-1]: e(i)
                if n == 1:
                    for i in ld[-1:]: e(i)
        stamp(z, 10)
        for sl in (1, 3, 2):
            for j in range(4): e(I(f'ds_write_b128 {v(vWA)}, {v(acc[sl] + 4*j, 4)} offset:{(sl-1)*4096 + j*1024}', 'r'))
        xs = vAR
        for i in range(8):
            e(f'v_lshlrev_b32 {v(xs+2*i)}, 16, {v(vX+i)}'); e(f'v_and_b32 {v(xs+2*i+1)}, 0xffff0000, {v(vX+i)}')
        e('@wait r'); e('s_barrier')
        dst = [acc[0] if w0 else vS, acc[1], acc[2]]
        for j in range(4):
            for i in ((0, 1, 2) if w0 else (1, 2, 0)): e(f'ds_read_b128 {v(dst[i] + 4*j, 4)}, {v(vRA[i])} offset:{j*1024}')
        g, tt, o = acc[0], acc[3], vX
        c2 = vAR + 16
        e(f'v_mov_b32 {v(c2)}, {fl(-LOG2E)}'); e(f'v_mov_b32 {v(c2+2)}, 1.0')
        for h in range(2):
            P = [8*h + 2*i for i in range(4)]
            for i in P: e(f'v_pk_add_f32 {v(g+i, 2)}, {v(g+i, 2)}, {v(vB2+i, 2)}')
            for i in P: e(f'v_pk_add_f32 {v(acc[1]+i, 2)}, {v(acc[1]+i, 2)}, {v(acc[2]+i, 2)}')
            for i in P: e(f'v_pk_add_f32 {v(g+i, 2)}, {v(g+i, 2)}, {v(acc[1]+i, 2)}')
            for i in P: e(f'v_pk_mul_f32 {v(tt+i, 2)}, {v(g+i, 2)}, {v(c2, 2)} op_sel_hi:[1,0]')
            for i in range(8*h, 8*h+8): e(f'v_exp_f32 {v(tt+i)}, {v(tt+i)}')
            for i in P: e(f'v_pk_add_f32 {v(tt+i, 2)}, {v(tt+i, 2)}, {v(c2+2, 2)} op_sel_hi:[1,0]')
            for i in P: e(f'v_pk_mul_f32 {v(g+i, 2)}, {v(g+i, 2)}, {v(vS+i, 2)}')
            for i in range(8*h, 8*h+8): e(f'v_rcp_f32 {v(tt+i)}, {v(tt+i)}')
            for i in P: e(f'v_pk_fma_f32 {v(g+i, 2)}, {v(g+i, 2)}, {v(tt+i, 2)}, {v(xs+i, 2)}')
            for i in P: e(f'v_cvt_pk_bf16_f32 {v(o + i//2)}, {v(g+i)}, {v(g+i+1)}')
            e(f'buffer_store_dwordx4 {v(o + 4*h, 4)}, {v(vOA)}, {OUT}, 0 offen offset:{16*h} {cfg.out_flags}')
        stamp(z, 11)
        e('s_endpgm')
    return outs

HEADER = open('cdna_kernels/%s.s.ref' % KN[:-7]).read().split('; Override launch')[0] if len(sys.argv) >= 0 else ''
def generate(code_bytes=65536):
    s = Stream(); prologue(s, code_bytes)
    sa = s.fork()
    streams = ffn(s) + att(sa)
    body = ''.join(x.text() for x in streams)
    info = [(len([i for i in x.out if i.kind != 'meta']), x.nops, x.waits) for x in streams]
    txt = HEADER + f'''; @launch grid=(256,1,1) block=(256,1,1) lds={LDS_BYTES}
.amdgcn_target "amdgcn-amd-amdhsa--gfx950"
.text
.globl {KN}
.p2align 8
.type {KN},@function
{KN}:
{body}L_exit:
    s_endpgm
L_code_end:
.section .rodata,"a"
.p2align 6
.amdhsa_kernel {KN}
  .amdhsa_next_free_vgpr 512
  .amdhsa_next_free_sgpr 102
  .amdhsa_accum_offset 256
  .amdhsa_group_segment_fixed_size 0
  .amdhsa_kernarg_size 88
  .amdhsa_user_sgpr_count 2
  .amdhsa_user_sgpr_kernarg_segment_ptr 1
  .amdhsa_system_sgpr_workgroup_id_x 1
.end_amdhsa_kernel
'''
    return txt, info

if __name__ == '__main__':
    out = sys.argv[1]
    for kv in sys.argv[2:]:
        k, val = kv.split('=', 1)
        setattr(cfg, k, eval(val))
    txt, info = generate(f'L_code_end - {KN} - 128')
    open(out, 'w').write(txt)
    print('streams (instr, nop states, waits):', info, file=sys.stderr)
```

```python
import re, copy

REG = re.compile(r'^(-|\|)?(?:abs\()?([vas])(?:(\d+)|\[(\d+):(\d+)\])\)?\|?$')
def regs_of(op):
    op = op.strip()
    if op in ('vcc', 'exec', 'm0', 'scc'): return {op}
    if op in ('vcc_lo', 'vcc_hi'): return {'vcc'}
    if op in ('exec_lo', 'exec_hi'): return {'exec'}
    m = REG.match(op)
    if not m: return set()
    f = m.group(2)
    if m.group(3) is not None: return {f + m.group(3)}
    return {f + str(i) for i in range(int(m.group(4)), int(m.group(5)) + 1)}

TRANS = ('v_exp_f32', 'v_rcp_f32', 'v_rsq_f32', 'v_sqrt_f32', 'v_log_f32')
PASSES = {'v_mfma_f32_32x32x16_bf16': 8, 'v_mfma_f32_16x16x32_bf16': 4, 'v_mfma_f32_4x4x4_16b_bf16': 2,
          'v_smfmac_f32_16x16x64_bf16': 4}

class I:
    def __init__(self, text, tag=None):
        self.text = text.strip(); self.tag = tag
        t = self.text.split(';')[0].strip()
        self.label = t.endswith(':'); self.directive = t.startswith('.')
        self.pseudo = t.startswith('@')
        parts = t.split(None, 1)
        self.op = parts[0] if parts else ''
        base = re.sub(r'_(e32|e64|dpp|sdwa)$', '', self.op); self.base = base
        rest = parts[1] if len(parts) > 1 else ''
        toks = []; depth = 0; cur = ''
        for ch in rest:
            if ch == '[': depth += 1
            if ch == ']': depth -= 1
            if ch == ',' and depth == 0: toks.append(cur.strip()); cur = ''
            else: cur += ch
        if cur.strip(): toks.append(cur.strip())
        mods = ''
        if toks:
            last = toks[-1].split(None, 1)
            toks[-1] = last[0]; mods = last[1] if len(last) > 1 else ''
        self.ops = toks; self.mods = mods
        self.rd = set(); self.wr = set(); self.kind = 'other'
        self.srcA = self.srcB = self.srcC = set(); self.passes = 0
        self.dma = False; self.store_data = set()
        R = [regs_of(x) for x in toks]
        allr = lambda l: set().union(*l) if l else set()
        if self.label or self.directive or self.pseudo or not self.op: self.kind = 'meta'
        elif base in PASSES:
            self.kind = 'mfma'; self.passes = PASSES[base]
            self.wr = R[0]; self.srcA = R[1]; self.srcB = R[2]
            if base.startswith('v_smfmac'): self.srcC = R[0]; self.srcB = R[2] | R[3]
            else: self.srcC = R[3]
            self.rd = self.srcA | self.srcB | self.srcC
        elif base.startswith('v_'):
            self.kind = 'trans' if base in TRANS else 'valu'
            if base.startswith('v_permlane') or base == 'v_swap_b32': self.wr = R[0] | R[1]; self.rd = R[0] | R[1]
            elif base.startswith('v_cmp'): self.wr = R[0]; self.rd = allr(R[1:])
            elif base in ('v_add_co_u32', 'v_addc_co_u32'): self.wr = R[0] | R[1]; self.rd = allr(R[2:])
            else:
                self.wr = R[0]; self.rd = allr(R[1:])
                if base in ('v_fmac_f32', 'v_dot2c_f32_bf16') or 'dpp' in self.op or 'row_' in mods or 'quad_perm' in mods: self.rd |= R[0]
            self.dpp = 'dpp' in self.op
        elif base.startswith('ds_'):
            self.kind = 'ds'
            if base.startswith('ds_read') or base.startswith('ds_bpermute'): self.wr = R[0]; self.rd = allr(R[1:])
            else: self.rd = allr(R)
        elif base.startswith('buffer_'):
            self.kind = 'vmem'
            if 'lds' in mods.split(): self.dma = True; self.rd = allr(R) | {'m0'}
            elif base.startswith('buffer_load'):
                self.wr = R[0]; self.rd = allr(R[1:])
                if 'd16' in base: self.rd |= R[0]
            elif base in ('buffer_inv', 'buffer_wbl2'): pass
            else:
                self.rd = allr(R)
                if base.endswith('x4') or base.endswith('x3'): self.store_data = R[0]
        elif base.startswith('s_load') or base in ('s_memtime', 's_memrealtime'):
            self.kind = 'smem'; self.wr = R[0]; self.rd = allr(R[1:])
        elif base.startswith('s_'):
            self.kind = 'salu'
            if base.startswith('s_cmp') or base.startswith('s_cbranch') or base in ('s_branch', 's_barrier', 's_waitcnt', 's_nop', 's_sleep', 's_setprio', 's_endpgm'):
                self.rd = allr(R)
                if 'vcc' in base: self.rd |= {'vcc'}
            else:
                self.wr = R[0]; self.rd = allr(R[1:])
                if 'saveexec' in base: self.wr |= {'exec'}
        else:
            raise ValueError('unknown instruction ' + self.text)
    def states(self):
        if self.kind == 'meta': return 0
        if self.base == 's_nop': return int(self.ops[0]) + 1
        return 1
    def cost(self):
        if self.kind == 'meta': return 0
        if self.kind == 'trans': return 2
        if self.kind == 'vmem': return 2
        if self.kind == 'mfma': return 3 if self.base.startswith('v_smfmac') else 2
        if self.base == 's_barrier': return 4
        if self.base == 'ds_write_b128': return 6
        return 1
    def pipe(self):
        return (2.25 if self.passes == 2 else self.passes)

def need_states(p, c):
    n = 0
    vg = lambda s: {r for r in s if r[0] in 'va' and r != 'vcc'}
    sg = lambda s: {r for r in s if r[0] == 's' or r == 'vcc'}
    if p.kind in ('valu', 'trans'):
        w = vg(p.wr)
        if c.kind == 'mfma' and w & c.rd: n = max(n, 2)
        if c.kind in ('valu', 'trans'):
            if c.base.startswith('v_permlane') and w & c.rd: n = max(n, 2)
            if getattr(c, 'dpp', False) and w & c.rd: n = max(n, 2)
            if c.base in ('v_readfirstlane_b32', 'v_readlane_b32') and w & c.rd: n = max(n, 1)
            if p.kind == 'trans' and w & (c.rd | c.wr): n = max(n, 1)
            if sg(p.wr) & c.rd: n = max(n, 2)
            if ('op_sel' in p.mods and not p.base.startswith('v_pk') or 'sdwa' in p.op) and w & (c.rd | c.wr): n = max(n, 1)
            if p.base.startswith('v_dot') and w & (c.rd | c.wr) and not (c.base == p.base and not (w & set().union(*[regs_of(x) for x in c.ops[1:3]]))): n = max(n, 3)
        if p.kind == 'trans' and c.kind in ('ds', 'vmem') and w & c.rd: n = max(n, 1)
        if p.base.startswith('v_dot') and c.kind in ('ds', 'vmem', 'mfma') and w & c.rd: n = max(n, 3)
        if c.kind == 'vmem' and sg(p.wr) & c.rd: n = max(n, 5)
        if c.kind == 'salu' and sg(p.wr) & c.rd: n = max(n, 5 if 'vcc' in c.base else 4)
        if 'exec' in p.wr and c.kind == 'mfma': n = max(n, 4)
    if p.kind == 'mfma':
        k = {2: 0, 4: 1, 8: 2}[p.passes]
        if c.kind == 'mfma':
            if p.wr & (c.srcA | c.srcB): n = max(n, (5, 8, 12)[k])
            if p.wr & c.srcC:
                if p.wr == c.srcC and p.passes == c.passes: n = max(n, (2, 0, 0)[k])
                else: n = max(n, (4, 6, 10)[k])
            elif p.wr & c.wr and not (p.wr == c.wr and p.passes == c.passes): n = max(n, (5, 8, 12)[k])
        elif c.kind in ('valu', 'trans', 'ds', 'vmem'):
            if p.wr & (c.rd | c.wr): n = max(n, (5, 8, 12)[k])
            if p.srcC & c.wr: n = max(n, (1, 3, 7)[k])
    if p.kind == 'salu' and 'm0' in p.wr and c.dma: n = max(n, 1)
    if p.store_data and p.store_data & c.wr: n = max(n, 2)
    return n

class Stream:
    def __init__(self):
        self.out = []; self.hist = []
        self.lgkm = []; self.vm = []; self.smem = False
        self.nops = 0; self.waits = 0; self.done = set()
    def fork(self):
        s = Stream(); s.hist = list(self.hist); s.lgkm = list(self.lgkm); s.vm = list(self.vm); s.smem = self.smem; s.done = set(self.done)
        return s
    def _raw(self, i):
        self.out.append(i)
        if i.kind != 'meta':
            self.hist.append(i); self.hist = self.hist[-24:]
    def _wait(self, vm=None, lg=None):
        t = 's_waitcnt'
        if vm is not None:
            vm = min(vm, 63); t += f' vmcnt({vm})'; self.vm = self.vm[len(self.vm) - vm:] if vm < len(self.vm) else self.vm
        if lg is not None:
            lg = min(lg, 15); t += f' lgkmcnt({lg})'; self.lgkm = self.lgkm[len(self.lgkm) - lg:] if lg < len(self.lgkm) else self.lgkm
            if lg == 0: self.smem = False
        self._raw(I(t)); self.waits += 1
    def e(self, text, tag=None):
        if isinstance(text, (list, tuple)):
            for t in text: self.e(t)
            return
        i = text if isinstance(text, I) else I(text, tag)
        if i.pseudo:
            self._pseudo(i); return
        if i.kind == 'meta':
            self._raw(i); return
        assert not (i.tag in self.done and i.tag not in ('rd', 'st')), 'issued after its wait: ' + i.text
        touch = i.rd | i.wr
        nl = nv = None
        for k, q in enumerate(self.lgkm):
            if q.wr & touch:
                nl = 0 if (q.kind == 'smem' or self.smem) else len(self.lgkm) - 1 - k
        for k, q in enumerate(self.vm):
            if q.wr & touch: nv = len(self.vm) - 1 - k
        if nl is not None or nv is not None: self._wait(nv, nl)
        need = 0; dist = 0
        for p in reversed(self.hist):
            need = max(need, need_states(p, i) - dist)
            dist += p.states()
            if dist >= 20: break
        if need > 0:
            self._raw(I(f's_nop {need-1}')); self.nops += need
        self._raw(i)
        if i.kind == 'ds': self.lgkm.append(i)
        if i.kind == 'smem': self.lgkm.append(i); self.smem = True
        if i.kind == 'vmem': self.vm.append(i)
        if i.base == 's_waitcnt':
            m = re.search(r'vmcnt\((\d+)\)', i.text)
            if m: n = int(m.group(1)); self.vm = self.vm[len(self.vm) - n:] if n < len(self.vm) else self.vm
            m = re.search(r'lgkmcnt\((\d+)\)', i.text)
            if m:
                n = int(m.group(1)); self.lgkm = self.lgkm[len(self.lgkm) - n:] if n < len(self.lgkm) else self.lgkm
                if n == 0: self.smem = False
    def _pseudo(self, i):
        if i.op == '@call': i.tag(self); return
        assert i.op == '@wait'
        tags = set(i.text.split()[1:]); self.done |= tags
        nv = nl = None
        for k, q in enumerate(self.vm):
            if q.tag in tags: nv = len(self.vm) - 1 - k
        for k, q in enumerate(self.lgkm):
            if q.tag in tags: nl = 0 if self.smem else len(self.lgkm) - 1 - k
        if nv is not None or nl is not None: self._wait(nv, nl)
    def text(self):
        return '\n'.join(('' if (i.label or i.directive) else '    ') + i.text for i in self.out) + '\n'

def mk(x): return x if isinstance(x, I) else I(x)

class G:
    def __init__(self, head=(), mem=(), valu=()):
        self.head = [mk(x) for x in head]; self.mem = [mk(x) for x in mem]; self.valu = [mk(x) for x in valu]
    def all(self): return self.head + self.mem + self.valu
    def pipe(self): return sum(x.pipe() for x in self.head)
    def issue(self): return sum(x.cost() for x in self.all())
    def time(self): return 4*max(self.pipe(), self.issue())

def interleave(groups, fillers, lo=0, hi=None):
    hi = len(groups) if hi is None else hi
    fillers = [mk(x) for x in fillers]
    rooms = [groups[k].pipe() - groups[k].issue() for k in range(lo, hi)]
    total = sum(f.cost() for f in fillers)
    a, b = -64.0, 4096.0
    for _ in range(50):
        mid = (a + b)/2
        if sum(max(0, r + mid) for r in rooms) >= total: b = mid
        else: a = mid
    fi = 0; credit = 0.0
    for k in range(lo, hi):
        g = groups[k]; credit += max(0, rooms[k-lo] + b); placed_valu = False
        while fi < len(fillers) and (credit >= fillers[fi].cost()*0.5 or k == hi - 1):
            f = fillers[fi]
            if f.kind in ('ds', 'vmem') or f.pseudo:
                if not placed_valu: g.mem.append(f)
                elif k == hi - 1: g.valu.append(f)
                else: break
            else:
                g.valu.append(f); placed_valu = True
            credit -= f.cost(); fi += 1
    return groups
```

```python
import sys, math, struct
from asmlib import I, G, mk, Stream, interleave

KN = "recurrent_scan__sliding_local_dilated__dense_activation_gelu__prompt_kernel"
def fl(x): return '0x%08x' % struct.unpack('<I', struct.pack('<f', x))[0]

class Cfg:
    D = 3
    AD = 6
    stamps = False
    spin = 1 << 20
    rt = False
    out_flags = ''
    rot = True
    brot = True
    p2split = 8
    p1split = 4
    sp1 = 56
    sp2 = 72
    early = True
    pre2 = 4
    prepub = 8
cfg = Cfg()

BS = 73*4096
FLAG = 0xA00000
STAMP = 0xB00000
WS_BYTES = 0xC00000
L_W, L_X, L_H, L_M = 0, 65536, 131072, 151552
HROW = 1040
L_ST = L_M
L_R = L_M + 4096
L_KH = L_M + 6144
LDS_BYTES = 163840
LOG2E = 1.4426950408889634
NEG = -1.0e30

sW, sMT, sN, sROT = 's4', 's5', 's6', 's7'
X, W, WS, BM, OUT, DBG, B1, B2, CLR, RDY, CODE, AS = [f's[{i}:{i+3}]' for i in (8, 12, 16, 20, 24, 28, 32, 36, 40, 44, 48, 84)]
sXO = [f's{52+i}' for i in range(8)]
sWO = [f's{60+i}' for i in range(8)]
sP, sCG, sBLK, sNT = 's68', 's69', 's70', 's71'
sXL, sWL, sSL = 's72', 's73', 's74'
sST = ['s75', 's76']
sT = ['s77', 's78', 's79', 's80', 's81', 's82']
sFL = 's83'
sBO, sAO, sQ = 's88', 's89', 's90'
sBL, sAL = 's78', 's79'
sMK = 's[92:93]'
sTS = 's[94:95]'; sT0 = 's[96:97]'; sSO = 's98'

def v(i, n=1): return f'v{i}' if n == 1 else f'v[{i}:{i+n-1}]'
def a(i, n=1): return f'a{i}' if n == 1 else f'a[{i}:{i+n-1}]'
class Alloc:
    def __init__(self, start): self.n = start
    def __call__(self, k=1, al=1):
        self.n = (self.n + al - 1)//al*al; r = self.n; self.n += k
        assert self.n <= 256, self.n
        return r

M32, M16, M4, SM = 'v_mfma_f32_32x32x16_bf16', 'v_mfma_f32_16x16x32_bf16', 'v_mfma_f32_4x4x4_16b_bf16', 'v_smfmac_f32_16x16x64_bf16'

al = Alloc(1)
vT = [al() for _ in range(7)]
vL16 = al(); vRDY = al(); vSTA = al()
vWD = [al() for _ in range(2)]; vWR = [al() for _ in range(2)]
vBD = [al() for _ in range(4)]; vBR = [al() for _ in range(2)]; vBX = [al() for _ in range(2)]
vIDX = al(); vSEL = al(4, 2)
vTF = [al(4, 2), al(4, 2)]; vF = al(4, 2); vCS = al(4, 2)
NF = 6
vWF = al(4*NF, 2)
vACC = [[al(16, 2), al(16, 2)], [al(16, 2), al(16, 2)]]
COMMON_END = al.n

def stamp(s, k):
    if not cfg.stamps: return
    s.e(f's_memtime {sTS}'); s.e('s_waitcnt lgkmcnt(0)')
    s.e(f's_sub_u32 s94, s94, s96'); s.e(f'v_mov_b32 {v(vSTA)}, s94')
    s.e(f'buffer_store_dword {v(vSTA)}, off, {WS}, {sSO} offset:{4*k}')

def prologue(s, code_bytes):
    e = s.e
    e('s_cmp_ge_u32 s2, 256'); e('s_cbranch_scc1 L_exit')
    if cfg.stamps or cfg.rt: e(f's_memtime {sT0}'); e('s_memrealtime s[100:101]')
    e('s_load_dwordx2 s[8:9], s[0:1], 0')
    e('s_load_dwordx2 s[12:13], s[0:1], 32')
    e('s_load_dwordx2 s[78:79], s[0:1], 8')
    e('s_load_dwordx2 s[16:17], s[0:1], 80')
    e('s_load_dwordx2 s[20:21], s[0:1], 48')
    e('s_load_dwordx2 s[80:81], s[0:1], 16')
    e('s_load_dwordx2 s[24:25], s[0:1], 64')
    e('s_load_dwordx2 s[28:29], s[0:1], 72')
    e('s_load_dwordx2 s[32:33], s[0:1], 40')
    e('s_load_dwordx2 s[36:37], s[0:1], 56')
    e('s_getpc_b64 s[48:49]')
    e(f's_mov_b32 s50, {code_bytes}'); e('s_mov_b32 s51, 0x20000')
    e('s_lshr_b32 s3, s2, 3'); e('s_lshl_b32 s77, s3, 7')
    e(f'v_lshlrev_b32 {v(vT[0])}, 12, v0')
    e(f'buffer_load_dword {v(vRDY)}, {v(vT[0])}, {CODE}, s77 offen')
    e(f'v_lshrrev_b32 {v(vT[0])}, 6, v0')
    e(f'v_lshlrev_b32 {v(vT[5])}, 8, v0')
    e(f'v_readfirstlane_b32 {sW}, {v(vT[0])}')
    e('v_and_b32 v0, 63, v0')
    e(f'v_lshlrev_b32 {v(vL16)}, 4, v0')
    if cfg.p1split == 4:
        e('s_and_b32 s77, s3, 3'); e(f's_lshr_b32 {sN}, s3, 2'); e(f's_and_b32 {sMT}, s2, 3'); e(f's_lshl_b32 {sMT}, {sMT}, 2'); e(f's_add_u32 {sMT}, {sMT}, s77')
        e(f's_lshl_b32 {sROT}, s77, 1'); e(f's_add_u32 {sROT}, {sROT}, {sN}')
    else:
        e('s_and_b32 s77, s3, 7'); e(f's_lshr_b32 {sN}, s3, 3'); e(f's_and_b32 {sMT}, s2, 1'); e(f's_lshl_b32 {sMT}, {sMT}, 3'); e(f's_add_u32 {sMT}, {sMT}, s77')
        e(f's_lshl_b32 {sROT}, {sN}, 1'); e(f's_add_u32 {sROT}, {sROT}, s77')
        e('s_and_b32 s77, s2, 2'); e('s_lshl_b32 s77, s77, 1'); e(f's_add_u32 {sN}, {sN}, s77')
    if not cfg.rot: e(f's_mov_b32 {sROT}, 0')
    if cfg.p2split == 8:
        e('s_and_b32 s77, s3, 3'); e(f's_lshr_b32 {sNT}, s3, 2'); e(f's_and_b32 {sBLK}, s2, 7'); e(f's_lshl_b32 {sBLK}, {sBLK}, 2'); e(f's_add_u32 {sBLK}, {sBLK}, s77')
    else:
        e('s_and_b32 s77, s3, 7'); e(f's_lshr_b32 {sNT}, s3, 3'); e(f's_and_b32 {sBLK}, s2, 3'); e(f's_lshl_b32 {sBLK}, {sBLK}, 3'); e(f's_add_u32 {sBLK}, {sBLK}, s77')
        e('s_and_b32 s77, s2, 4'); e(f's_add_u32 {sNT}, {sNT}, s77')
    e(f's_and_b32 {sP}, {sW}, 1'); e(f's_lshr_b32 {sCG}, {sW}, 1')
    for c in range(8):
        e(f's_add_u32 s77, {sROT}, {c}'); e('s_and_b32 s77, s77, 7'); e(f's_lshl_b32 {sXO[c]}, s77, 7')
    e(f's_lshl_b32 {sXL}, {sW}, 12'); e(f's_add_u32 {sXL}, {sXL}, {L_X}')
    e(f's_lshl_b32 {sWL}, {sW}, 11'); e(f's_lshl_b32 {sSL}, {sW}, 10')
    for r, n in ((10, 2097152), (18, WS_BYTES), (26, 2097152), (30, 256), (34, 3584), (38, 1024)):
        e(f's_mov_b32 s{r}, {n}')
    for r in (11, 15, 19, 23, 27, 31, 35, 39, 43, 47, 87): e(f's_mov_b32 s{r}, 0x20000')
    e('s_cmp_eq_u32 s2, 0'); e(f's_cselect_b32 s42, {WS_BYTES}, 0'); e('s_cselect_b32 s46, 256, 0')
    if cfg.stamps or cfg.rt:
        e('s_lshl_b32 s77, s2, 2'); e(f's_add_u32 s77, s77, {sW}'); e(f's_lshl_b32 {sSO}, s77, 7'); e(f's_add_u32 {sSO}, {sSO}, {STAMP}')
    e('s_bitcmp1_b32 s2, 2'); e('s_cbranch_scc1 L_att')

def xw_setup(s, stride, vXD, colbase):
    e = s.e; t0, t1, t2 = [v(x) for x in vT[:3]]
    for c in range(8): e(f's_mul_i32 {sWO[c]}, {sXO[c]}, {stride//2}')
    e(f's_lshl_b32 s77, {sMT}, 7'); e(f's_lshl_b32 s82, {sP}, 6'); e('s_add_u32 s77, s77, s82'); e(f's_add_u32 s77, s77, {sCG}')
    e('s_lshl_b32 s77, s77, 10')
    e(f'v_lshrrev_b32 {t0}, 3, v0'); e(f'v_lshrrev_b32 {t1}, 4, v0'); e(f'v_and_b32 {t2}, 7, v0')
    e(f'v_xor_b32 {v(vXD[0])}, {t1}, {t2}'); e(f'v_lshlrev_b32 {v(vXD[0])}, 4, {v(vXD[0])}')
    e(f'v_lshl_add_u32 {v(vXD[0])}, {t0}, 11, {v(vXD[0])}'); e(f'v_add_u32 {v(vXD[0])}, s77, {v(vXD[0])}')
    e(f'v_xor_b32 {v(vXD[1])}, 64, {v(vXD[0])}'); e(f'v_add_u32 {v(vXD[1])}, {16384-1024}, {v(vXD[1])}')
    e(f'v_add_u32 {v(vXD[2])}, {2*(16384-1024)}, {v(vXD[0])}'); e(f'v_add_u32 {v(vXD[3])}, {2*(16384-1024)}, {v(vXD[1])}')
    e(f'v_and_b32 {t1}, 1, {t1}'); e(f'v_lshlrev_b32 {t1}, 2, {t1}'); e(f'v_xor_b32 {t1}, {t1}, {t2}'); e(f'v_lshlrev_b32 {t1}, 4, {t1}')
    e(f's_mul_i32 s77, {sW}, {16*stride}'); e(f's_add_u32 s77, s77, {colbase}')
    e(f'v_mul_u32_u24 {v(vWD[0])}, {stride}, {t0}'); e(f'v_add3_u32 {v(vWD[0])}, {v(vWD[0])}, {t1}, s77')
    e(f'v_add_u32 {v(vWD[1])}, {8*stride-1024}, {v(vWD[0])}')
    e(f's_lshl_b32 s77, {sNT}, 7')
    e(f'v_lshlrev_b32 {v(vBD[0])}, 10, {t0}'); e(f'v_add3_u32 {v(vBD[0])}, {v(vBD[0])}, {t1}, s77')

def xjob(c, vXD):
    u = [[I(f'buffer_load_dwordx4 {v(vXD[q])}, {X}, {sXO[c]} offen offset:{q*1024} lds', f'c{c}')] for q in range(4)]
    u[0].insert(0, I(f's_add_u32 m0, {sXL}, {(c & 3)*16384}'))
    return u
def wjob(c, single=None):
    if single is not None:
        return [[I(f's_add_u32 m0, {sSL}, {L_W + (c & 7)*8192}'), I(f'buffer_load_dwordx4 {v(single)}, {W}, {sWO[c & 7]} offen lds', f'c{c}')]]
    u = [[I(f'buffer_load_dwordx4 {v(vWD[q])}, {W}, {sWO[c & 7]} offen offset:{q*1024} lds', f'c{c}')] for q in range(2)]
    u[0].insert(0, I(f's_add_u32 m0, {sWL}, {L_W + (c & 7)*8192}'))
    return u

class Rec:
    def __init__(self): self.l = []
    def e(self, x, tag=None): self.l.append(x if isinstance(x, I) else I(x, tag))

def weave(s, units, instrs, every):
    rd = ('s_cselect_b32', 's_addc_u32', 's_cbranch_scc0', 's_cbranch_scc1')
    nowr = ('s_mov_b32', 's_mov_b64', 's_mul_i32', 's_waitcnt', 's_nop', 's_barrier')
    def safe(k):
        for i in instrs[k:]:
            if i.base in rd: return False
            if i.kind == 'salu' and i.base not in nowr: return True
        return True
    units = list(units); n = every
    for k, i in enumerate(instrs):
        if units and n >= every and safe(k):
            for x in units.pop(0): s.e(x)
            n = 0
        s.e(i); n += 1
    for u in units:
        for x in u: s.e(x)

def start_loads(s):
    e = s.e
    z = vACC[1][0]
    for i in range(4): e(f'v_mov_b32 {v(z+i)}, 0')
    e('s_waitcnt lgkmcnt(0)')
def clear_flags(s):
    e = s.e
    e('s_mov_b32 s40, s16'); e('s_mov_b32 s41, s17'); e('s_mov_b32 s44, s28'); e('s_mov_b32 s45, s29')
    e(f's_mov_b32 s77, {FLAG}')
    e(I(f'buffer_store_dwordx4 {v(vACC[1][0], 4)}, {v(vT[5])}, {CLR}, s77 offen sc1', 'c1'))

def read_setup(s, vXR, nslots_swapped):
    e = s.e; t0, t1, t2, t3 = [v(x) for x in vT[:4]]
    e(f'v_and_b32 {t0}, 31, v0'); e(f'v_lshrrev_b32 {t1}, 5, v0'); e(f'v_bfe_u32 {t2}, v0, 1, 3')
    e(f'v_xor_b32 {t2}, {t2}, {t1}'); e(f'v_lshlrev_b32 {t2}, 4, {t2}'); e(f'v_lshl_add_u32 {t2}, {t0}, 7, {t2}')
    e(f's_lshl_b32 s77, {sCG}, 6'); e(f'v_xor_b32 {t2}, s77, {t2}')
    e(f's_lshl_b32 s77, {sP}, 13'); e(f's_add_u32 s77, s77, {L_X}')
    if nslots_swapped:
        e(f's_lshl_b32 s82, {sCG}, 12'); e('s_add_u32 s77, s77, s82')
    e(f'v_add_u32 {v(vXR[0])}, s77, {t2}')
    for k in range(1, 4): e(f'v_xor_b32 {v(vXR[k])}, {k << 5}, {v(vXR[0])}')
    if nslots_swapped:
        for k in range(4): e(f'v_xor_b32 {v(vXR[4+k])}, 4096, {v(vXR[k])}')
    e(f'v_bfe_u32 {t0}, v0, 2, 2'); e(f'v_bfe_u32 {t2}, v0, 4, 1'); e(f'v_and_b32 {t3}, 3, v0')
    e(f'v_lshlrev_b32 {t3}, 3, {t3}'); e(f'v_lshl_add_u32 {t3}, {t2}, 5, {t3}')
    e(f'v_lshl_add_u32 {t2}, {t1}, 3, {t0}')
    w0 = v(vWR[0])
    e(f'v_lshl_add_u32 {w0}, {t2}, 7, {t3}')
    e(f'v_bfe_u32 {v(vT[4])}, v0, 3, 1'); e(f'v_xor_b32 {v(vT[4])}, {sCG}, {v(vT[4])}'); e(f'v_lshl_add_u32 {w0}, {v(vT[4])}, 6, {w0}')
    e(f's_lshl_b32 s77, {sCG}, 12'); e(f'v_add_u32 {w0}, s77, {w0}'); e(f'v_xor_b32 {v(vWR[1])}, 4096, {w0}')
    e(f'v_mov_b32 {v(vIDX)}, 0x44444444'); e(f'v_mov_b32 {v(vT[4])}, 0xeeeeeeee')
    e(f'v_and_b32 {t0}, 1, v0'); e(f'v_cmp_eq_u32 vcc, 1, {t0}'); e(f'v_cndmask_b32 {v(vIDX)}, {v(vIDX)}, {v(vT[4])}, vcc')
    e(f'v_and_b32 {t0}, 4, v0'); e(f'v_cmp_eq_u32 vcc, 0, {t0}'); e(f'v_mov_b32 {v(vT[4])}, 0x3f803f80')
    e(f'v_cndmask_b32 {v(vSEL)}, 0, {v(vT[4])}, vcc'); e(f'v_mov_b32 {v(vSEL+1)}, {v(vSEL)}')
    e(f'v_sub_u32 {v(vSEL+2)}, {v(vT[4])}, {v(vSEL)}'); e(f'v_mov_b32 {v(vSEL+3)}, {v(vSEL+2)}')
    for r in (vTF[0]+2, vTF[0]+3, vTF[1]+2, vTF[1]+3, vF+1, vF+2, vF+3, vCS, vCS+1, vCS+2, vCS+3): e(f'v_mov_b32 {v(r)}, 0')

def p2_setup(s):
    e = s.e; t0, t1, t2, t3 = [v(x) for x in vT[:4]]
    for q in range(1, 4): e(f'v_add_u32 {v(vBD[q])}, {q*(8192-1024)}, {v(vBD[0])}')
    e(f's_mul_i32 s77, {sW}, 37'); e('s_add_u32 s77, s77, -4'); e(f's_cmp_eq_u32 {sW}, 1'); e('s_cselect_b32 s77, 32, s77'); e('s_cselect_b32 s82, 38, 37')
    e(f's_cmp_eq_u32 {sW}, 0'); e('s_cselect_b32 s77, 0, s77'); e('s_cselect_b32 s82, 32, s82')
    e('s_cselect_b32 s20, s80, s20'); e('s_cselect_b32 s21, s81, s21'); e('s_cselect_b32 s3, 0, 32')
    e('s_sub_u32 s3, s77, s3'); e('s_lshl_b32 s3, s3, 14'); e('s_add_u32 s20, s20, s3'); e('s_addc_u32 s21, s21, 0')
    e('s_lshl_b32 s22, s82, 14'); e('s_lshl_b32 s86, s82, 11')
    e(f's_mul_i32 s3, {sBLK}, {BS}'); e('s_lshl_b32 s77, s77, 11'); e('s_add_u32 s3, s3, s77')
    e('s_add_u32 s84, s16, s3'); e('s_addc_u32 s85, s17, 0')
    e(f's_lshl_b32 {sQ}, {sW}, 14')
    e('s_add_u32 s82, s82, 1'); e('s_lshr_b32 s82, s82, 1')
    sh = 32//cfg.p2split
    e(f's_and_b32 s3, {sBLK}, {sh-1 if cfg.brot else 0}'); e('s_mul_i32 s3, s3, s82'); e(f's_add_u32 s3, s3, {sh-1}'); e(f's_lshr_b32 s3, s3, {sh.bit_length()-1}')
    e(f's_lshl_b32 {sBO}, s3, 15'); e(f's_lshl_b32 {sAO}, s3, 12'); e(f's_lshl_b32 {sBL}, s82, 15'); e(f's_lshl_b32 {sAL}, s82, 12')
    e(f'v_bfe_u32 {t0}, v0, 2, 2'); e(f'v_lshrrev_b32 {t1}, 5, v0'); e(f'v_lshl_add_u32 {t0}, {t1}, 2, {t0}')
    e(f'v_and_b32 {t1}, 1, v0'); e(f'v_lshlrev_b32 {t1}, 5, {t1}'); e(f'v_and_b32 {t2}, 16, v0'); e(f'v_and_b32 {t3}, 2, v0')
    e(f'v_lshl_add_u32 {t1}, {t3}, 2, {t1}'); e(f'v_add_u32 {t1}, {t1}, {t2}'); e(f'v_lshl_add_u32 {t1}, {t0}, 7, {t1}')
    e(f'v_bfe_u32 {t2}, v0, 3, 1'); e(f'v_xor_b32 {t2}, {sCG}, {t2}'); e(f'v_lshl_add_u32 {t1}, {t2}, 6, {t1}')
    e(f'v_add_u32 {v(vBR[0])}, {sQ}, {t1}'); e(f'v_xor_b32 {v(vBR[1])}, 64, {v(vBR[0])}')
    for b in range(2): e(f'v_add_u32 {v(vBX[b])}, {L_X}, {v(vBR[b])}')

BUF = {}
def b_round(r, nsteps):
    u = []
    for h in range(nsteps//2):
        g = [[I(f'buffer_load_dwordx4 {v(vBD[q])}, {BM}, {sBO} offen offset:{q*1024} lds', f'b{r}')] for q in range(4)]
        g[0].insert(0, I(f's_add_u32 m0, {sQ}, {BUF[r] + h*4096}'))
        g[3] += [I(f's_add_u32 {sBO}, {sBO}, 32768'), I(f's_cmp_eq_u32 {sBO}, {sBL}'), I(f's_cselect_b32 {sBO}, 0, {sBO}')]
        u += g
    return u
def b_move(r, n, breg):
    l = [I(f'@wait b{r}')]
    for k in range(n):
        for b in range(2):
            ad = vBX[b] if BUF[r] else vBR[b]
            for h in range(2): l.append(I(f'ds_read_b64_tr_b16 {breg(8*r+k, b, h)}, {v(ad)} offset:{k*2048 + h*1024}', f'm{r}'))
    return l

def build_F(cs_ops, bias=None):
    t0, t1 = v(vT[0]), v(vT[1])
    l = list(cs_ops)
    l += [f'v_cvt_pk_bf16_f32 {t1}, {t0}, {t0}', f'v_and_b32 {t1}, 0xffff0000, {t1}', f'v_sub_f32 {t0}, {t0}, {t1}',
          f'v_cvt_pk_bf16_f32 {v(vF)}, {t1}, {t0}']
    if bias is not None: l.append(f'v_mov_b32 {v(vF+1)}, {v(bias)}')
    return l
CS_SM = [f'v_add_f32 {v(vT[0])}, {v(vCS)}, {v(vCS+1)}', f'v_mov_b32 {v(vCS)}, 0', f'v_mov_b32 {v(vCS+1)}, 0']

def stats_partial(vRS, vSQ, vSX, tmp):
    l = []
    l += [f'v_and_b32 {v(vT[2])}, 1, v0', f'v_cmp_eq_u32 vcc, 1, {v(vT[2])}', f'v_and_b32 {v(vT[2])}, 2, v0', f'v_cmp_eq_u32 {sMK}, 2, {v(vT[2])}']
    for sl in range(2):
        q0, q1 = vSQ[2*sl], vSQ[2*sl+1]
        l.append(f'v_add_f32 {v(tmp+2*sl)}, {v(vRS[sl])}, {v(vRS[sl]+1)}')
        for i in range(4): l.append(f'v_add_f32 {v(q0+i)}, {v(q0+i)}, {v(q1+i)}')
        l += [f'v_cndmask_b32 {v(q0)}, {v(q0)}, {v(q0+1)}, vcc', f'v_cndmask_b32 {v(q0+2)}, {v(q0+2)}, {v(q0+3)}, vcc',
              f'v_cndmask_b32 {v(q0)}, {v(q0)}, {v(q0+2)}, {sMK}', f'v_mov_b32 {v(q0+1)}, {v(q0)}']
    for sl in range(2):
        q0 = vSQ[2*sl]
        l += [f'v_permlane32_swap_b32 {v(q0)}, {v(q0+1)}']
    for sl in range(2):
        q0 = vSQ[2*sl]
        l += [f'v_add_f32 {v(tmp+2*sl+1)}, {v(q0)}, {v(q0+1)}']
    l.append(I(f'ds_write_b128 {v(vSX)}, {v(tmp, 4)}', 'st'))
    return l

def stats_scalars(S, Q, t, dst_m2, dst_dpk, dst_d, dst_r):
    return [f'v_mul_f32 {S}, {fl(1/512)}, {S}', f'v_mul_f32 {Q}, {fl(1/512)}, {Q}', f'v_fma_f32 {Q}, -{S}, {S}, {Q}', f'v_max_f32 {Q}, 0, {Q}',
            f'v_cvt_pk_bf16_f32 {dst_m2}, -{S}, -{S}', f'v_cvt_pk_bf16_f32 {t}, {Q}, {Q}', f'v_and_b32 {t}, 0xffff0000, {t}',
            f'v_add_f32 {t}, {fl(1e-5)}, {t}', f'v_cvt_pk_bf16_f32 {t}, {t}, {t}', f'v_and_b32 {t}, 0xffff0000, {t}',
            f'v_sqrt_f32 {t}, {t}', f'v_cvt_pk_bf16_f32 {dst_dpk}, {t}, 0', f'v_lshlrev_b32 {dst_d}, 16, {dst_dpk}', f'v_rcp_f32 {dst_r}, {dst_d}']

def zip2(x, y):
    o = []
    for i in range(max(len(x), len(y))):
        if i < len(x): o.append(x[i])
        if i < len(y): o.append(y[i])
    return o

def stats_final(vSX, tmp, tmp2, swapped, vD, vR):
    l = [f'v_xor_b32 {v(vSX)}, 2048, {v(vSX)}', f'ds_read_b128 {v(tmp2, 4)}, {v(vSX)}', f'v_cmp_gt_u32 vcc, 32, v0']
    for i in range(4): l.append(f'v_add_f32 {v(tmp+i)}, {v(tmp+i)}, {v(tmp2 + (i ^ 2 if swapped else i))}')
    l += zip2(*[stats_scalars(v(tmp+2*sl), v(tmp+2*sl+1), v(tmp2+sl), v(vTF[sl]), v(vTF[sl]+1), v(vD[sl]), v(vR[sl])) for sl in range(2)])
    for sl in range(2):
        for i in range(2): l.append(f'v_cndmask_b32 {v(vTF[sl]+i)}, 0, {v(vTF[sl]+i)}, vcc')
    return l

def build_spine(kinds, vXR, swapped, vXD, stats, single=None, halo=None, jobs_extra=None, more=None):
    nk = 32*len(kinds); NG = 8*len(kinds)
    def reads(k):
        if k >= nk: return []
        c, sl = k//4, k & 3; f = vWF + 4*(k % NF); l = []
        if kinds[k//32] == 'S':
            for h in range(2): l.append(I(f'ds_read_b64_tr_b16 {v(f+2*h, 2)}, {v(single[1][sl >> 1])} offset:{L_W + (c & 7)*8192 + (sl & 1)*1024 + h*256}', 'rd'))
        else:
            for h in range(2): l.append(I(f'ds_read_b64_tr_b16 {v(f+2*h, 2)}, {v(vWR[sl >> 1])} offset:{L_W + (c & 7)*8192 + (sl & 1)*2048 + h*512}', 'rd'))
        if k < 32:
            for u in range(2):
                ad = vXR[sl + 4*u] if swapped else vXR[sl]
                l.append(I(f'ds_read_b128 {a(128*u + 4*k, 4)}, {v(ad)} offset:{(c & 3)*16384 + (0 if swapped else u*4096)}', 'rd'))
        if halo and k >= 32:
            l.append(I(f'ds_read_b128 {v(halo["f"] + 4*(k % halo["n"]), 4)}, {v(halo["ad"][sl >> 1])} offset:{(c & 7)*128 + (sl & 1)*32}', 'rd'))
        return l
    def wj(c):
        if c >= NG: return []
        u = wjob(c, single[0] if kinds[c//8] == 'S' else None)
        if c % 8 == 0 and c > 0 and kinds[c//8] != 'S': u[0] = [I(x) for x in jobs_extra(c//8)] + u[0]
        return u
    def barrier(g):
        if g >= NG or (g > 10 and g % 2): return [], []
        tags = [f'c{g}'] + ([f'c{g+1}'] if g >= 10 else []) + (['st'] if g in (8, 9) else []) + (['rd'] if g <= 8 else [])
        l = [I('@wait ' + ' '.join(tags)), I('s_barrier')]
        j = []
        if g == 0: j = (xjob(2, vXD) + wj(2))[cfg.pre2:] + xjob(3, vXD) + wj(3)
        if g == 1: j = [[I(f'buffer_store_dword {v(vIDX)}, off, {RDY}, 0 sc1')]]
        if 1 <= g <= 4: j += xjob(g+3, vXD) + wj(g+3)
        if g == 5: j = wj(8) + wj(9) + wj(10)
        if g == 6: j = wj(11) + wj(12) + wj(13)
        if g == 8: j = wj(14)
        if g >= 10: j = wj(g+5) + wj(g+6)
        return l, j + more.get(g, [])
    pre, pend = barrier(0)
    for k in range(3): pre += reads(k)
    groups = []; first = []; after = {}
    for k in range(nk):
        st = k//32; kk = k % 32; f = v(vWF + 4*(k % NF), 4); acc = vACC[st & 1]
        first.append(len(groups))
        if kk % 2 == 0 and not (halo and st > 0):
            groups.append(G([f'{SM} {v(vCS, 4)}, {v(vSEL, 4)}, {v(vWF + 4*(k % NF), 8)}, {v(vIDX)}']))
        if halo and st > 0:
            h = v(halo['f'] + 4*(k % halo['n']), 4); ha = v(halo['acc'], 4)
            groups.append(G([f'{M16} {ha}, {h}, {f}, {ha if kk else 0}']))
        ms = []
        for u in range(1 if kinds[st] == 'S' else 2):
            x = a(128*u + 4*kk, 4); d = v(acc[u], 16)
            ab = f'{x}, {f}' if kinds[st] == 'N' else f'{f}, {x}'
            ms.append(f'{M32} {d}, {ab}, {d if kk else 0}')
        bar, jb, rd = [], [], reads(k + 3)
        if k < 32 and k % 4 == 1: rd = []
        elif k < 32 and k % 4 == 2: (bar, jb), rd = barrier((k + 2)//4), reads(k + 2) + rd
        elif k >= 32 and k % 4 == 1: bar, jb = barrier((k + 3)//4)
        after[len(groups)] = jb
        if len(ms) == 2:
            h = (len(rd) + 1)//2 if not bar or k < 32 else 0
            groups.append(G([ms[0]], bar + rd[:h])); groups.append(G([ms[1]], rd[h:]))
        else:
            groups.append(G([ms[0]], bar + rd))
        if st == 0 and kk % 4 == 1:
            vRS, vSQ = stats
            for u in range(2): groups.append(G([f'{SM} {v(vRS[u], 4)}, {v(vSEL, 4)}, {a(128*u + 4*(kk-1), 8)}, {v(vIDX)}']))
            for h in range(4):
                for u in range(2):
                    x = a(128*u + 4*(kk-1) + 2*h, 2); q = v(vSQ[2*u + (h & 1)], 4)
                    groups.append(G([f'{M4} {q}, {x}, {x}, {q}']))
    first.append(len(groups))
    t = 0; due = 0
    for n, g in enumerate(groups):
        sp = cfg.sp1 if n < first[32] else cfg.sp2
        if pend and t >= due and (g.pipe() - g.issue() >= 2 or t >= due + 40):
            u = pend.pop(0); d = [i for i, x in enumerate(u) if x.kind == 'vmem'][0]
            pre_v = [x for x in u[:d] if x.kind == 'valu']; pre_s = [x for x in u[:d] if x.kind != 'valu']
            groups[n-1].valu += pre_v
            g.mem = pre_s + g.mem + u[d:]; due = max(due + sp, t + sp/2)
        pend += after.get(n, [])
        t += 4*g.pipe()*(1.5 if n >= first[96 if nk > 96 else nk] else 1.1 if n >= first[32] else 1)
    assert not pend, len(pend)
    return pre, groups, first

def corr(st, kind, n=2):
    l = []
    for u in range(n):
        d = v(vACC[st & 1][u], 16); t = v(vTF[u], 4); f = v(vF, 4)
        l.append(G([f'{M32} {d}, {t}, {f}, {d}' if kind == 'N' else f'{M32} {d}, {f}, {t}, {d}']))
    return l

class Sched:
    def __init__(self, groups, first): self.g = groups; self.first = first
    def insert(self, k, newgroups):
        p = self.first[k]; self.g[p:p] = newgroups
        self.first = [x + len(newgroups) if i >= k else x for i, x in enumerate(self.first)]
    def fill(self, k0, k1, fillers, skip=0, cut=0):
        interleave(self.g, fillers, self.first[k0] + skip, self.first[k1] - cut)
    def emit(self, s, name):
        est = [int(sum(g.time() for g in self.g[self.first[k]:self.first[min(k+32, len(self.first)-1)]])) for k in range(0, len(self.first)-1, 32)]
        print(name, 'estimated cycles per step', est, file=sys.stderr)
        for n, g in enumerate(self.g):
            for k in (32, 64, 96):
                if k < len(self.first) - 1 and n == self.first[k]: stamp(s, 1 + k//32)
            for i in g.all(): s.e(i)

def staging(first_regs):
    BUF.clear()
    BUF.update({0: L_X, 1: L_X, 2: L_W, 3: L_X, 4: L_W} if cfg.early else {0: L_X, 1: L_W, 2: L_X, 3: L_W, 4: L_X})
    order = first_regs + [r for r in range(0, 256, 4) if r not in first_regs]
    def breg(k, b, h=None):
        i = 2*k + b; f, i = (a, order[i]) if i < 64 else (v, P2_BV + 4*(i - 64))
        return f(i, 4) if h is None else f(i + 2*h, 2)
    return breg
P2_BV = 208

def gelu(acc, K1, K2, Dv, tmp, pk, regs, soff, packed):
    l = []
    for half in range(2):
        seqs = []
        for j in (2*half, 2*half+1):
            r = acc + 4*j; t = tmp + 4*(j & 1); q = []
            if packed:
                for i in (0, 2): q.append(f'v_pk_mul_f32 {v(t+i, 2)}, {v(r+i, 2)}, {v(r+i, 2)}')
                for i in (0, 2): q.append(f'v_pk_fma_f32 {v(t+i, 2)}, {v(t+i, 2)}, {v(K2, 2)}, {v(K1, 2)} op_sel_hi:[1,0,0]')
                for i in (0, 2): q.append(f'v_pk_mul_f32 {v(t+i, 2)}, {v(t+i, 2)}, {v(r+i, 2)}')
                for i in range(4): q.append(f'v_exp_f32 {v(t+i)}, {v(t+i)}')
                for i in (0, 2): q.append(f'v_pk_fma_f32 {v(t+i, 2)}, {v(t+i, 2)}, {v(Dv, 2)}, {v(Dv, 2)} op_sel_hi:[1,0,0]')
                for i in range(4): q.append(f'v_rcp_f32 {v(t+i)}, {v(t+i)}')
                for i in (0, 2): q.append(f'v_pk_mul_f32 {v(t+i, 2)}, {v(t+i, 2)}, {v(r+i, 2)}')
            else:
                for i in range(4): q.append(f'v_mul_f32 {v(t+i)}, {v(r+i)}, {v(r+i)}')
                for i in range(4): q.append(f'v_fma_f32 {v(t+i)}, {v(t+i)}, {v(K2)}, {v(K1)}')
                for i in range(4): q.append(f'v_mul_f32 {v(t+i)}, {v(t+i)}, {v(r+i)}')
                for i in range(4): q.append(f'v_exp_f32 {v(t+i)}, {v(t+i)}')
                for i in range(4): q.append(f'v_fma_f32 {v(t+i)}, {v(t+i)}, {v(Dv)}, {v(Dv)}')
                for i in range(4): q.append(f'v_rcp_f32 {v(t+i)}, {v(t+i)}')
                for i in range(4): q.append(f'v_mul_f32 {v(t+i)}, {v(t+i)}, {v(r+i)}')
            o = pk + 4*half + 2*(j & 1)
            for i in range(2): q.append(f'v_cvt_pk_bf16_f32 {v(o+i)}, {v(t+2*i)}, {v(t+2*i+1)}')
            seqs.append(q)
        l += zip2(*seqs) if packed else seqs[0] + seqs[1]
        l.append(I(f'buffer_store_dwordx4 {v(pk + 4*half, 4)}, {v(vL16)}, {WS}, {soff} offen offset:{2048*half} sc1', 'h'))
    return l

def ffn(s):
    e = s.e; al = Alloc(COMMON_END)
    vXD = [al() for _ in range(4)]; vXR = [al() for _ in range(8)]
    vSD = al(); vSR = [al(), al()]; vB1 = [al() for _ in range(4)]; vSX = al()
    vK1 = [al(2, 2), al(2, 2)]; vK2 = [al(2, 2), al(2, 2)]; vD = [al(2, 2), al(2, 2)]; vR = [al(), al()]
    vRS = [al(4, 2), al(4, 2)]; vSQ = [al(4, 2) for _ in range(4)]
    vG = al(8, 2); vPK = al(8, 4); vS4 = al(4, 2); vS5 = al(4, 2)
    e(f's_mul_i32 s91, {sN}, 448'); e(f's_and_b32 s3, {sN}, 1'); e('s_lshl_b32 s99, s3, 6'); e('s_add_u32 s99, s99, s91')
    e('s_cmp_eq_u32 s3, 0'); e('s_cselect_b32 s3, 384, 0'); e('s_add_u32 s91, s91, s3')
    e('s_mov_b32 s14, 1835008')
    xw_setup(s, 3584, vXD, 's99')
    start_loads(s)
    r = Rec(); e = r.e
    clear_flags(r)
    read_setup(r, vXR, True)
    t0, t1, t2, t3 = [v(x) for x in vT[:4]]
    e(f'v_lshl_add_u32 {v(vSR[0])}, {t2}, 6, {t3}'); e(f's_lshl_b32 s77, {sCG}, 11'); e(f'v_add_u32 {v(vSR[0])}, s77, {v(vSR[0])}')
    e(f'v_xor_b32 {v(vSR[1])}, 2048, {v(vSR[0])}')
    e(f'v_lshrrev_b32 {t0}, 2, v0'); e(f'v_and_b32 {t1}, 3, v0'); e(f'v_lshlrev_b32 {t1}, 4, {t1}')
    e(f's_mul_i32 s77, {sW}, {16*3584}'); e('s_add_u32 s77, s77, s91')
    e(f'v_mul_u32_u24 {v(vSD)}, 3584, {t0}'); e(f'v_add3_u32 {v(vSD)}, {v(vSD)}, {t1}, s77')
    for q in vRS + vSQ:
        for i in range(4): e(f'v_mov_b32 {v(q+i)}, 0')
    p2_setup(r)
    e(f'v_and_b32 {t0}, 31, v0'); e(f'v_lshlrev_b32 {t0}, 1, {t0}')
    e(f's_lshl_b32 s77, {sCG}, 6'); e('s_add_u32 s77, s77, s99')
    for st in range(3): e(f'buffer_load_ushort {v(vB1[st])}, {t0}, {B1}, s77 offen offset:{128*st}')
    e(f'buffer_load_ushort {v(vB1[3])}, {t0}, {B1}, s91 offen')
    e('s_lshl_b32 s77, s77, 6'); e(f's_lshl_b32 s82, {sP}, 10'); e('s_add_u32 s82, s82, 65536')
    e(f's_lshl_b32 s3, {sMT}, 1'); e(f's_add_u32 s3, s3, {sCG}')
    e(f's_mul_i32 {sST[0]}, s3, {BS}'); e('s_xor_b32 s3, s3, 1'); e(f's_mul_i32 {sST[1]}, s3, {BS}')
    e(f's_add_u32 {sST[0]}, {sST[0]}, s82'); e(f's_add_u32 {sST[1]}, {sST[1]}, s82')
    e('s_lshl_b32 s91, s91, 6'); e(f's_add_u32 s91, s91, {sST[0]}')
    e(f's_add_u32 {sST[0]}, {sST[0]}, s77'); e(f's_add_u32 {sST[1]}, {sST[1]}, s77')
    e(f's_lshl_b32 {sFL}, {sMT}, 4'); e(f's_add_u32 {sFL}, {sFL}, {sN}')
    e(f'v_add_u32 {v(vSX)}, {sSL}, {v(vL16)}'); e(f'v_add_u32 {v(vSX)}, {L_ST}, {v(vSX)}')
    first_units = xjob(0, vXD) + wjob(0) + (wjob(1) if cfg.p1split == 4 else xjob(1, vXD))
    weave(s, first_units, r.l, 10)
    e = s.e
    for u in (xjob(1, vXD) if cfg.p1split == 4 else wjob(1)) + (xjob(2, vXD) + wjob(2))[:cfg.pre2]:
        for i in u: e(i)
    stamp(s, 0)
    breg = staging([128 + 4*i for i in range(16)])
    b0 = b_round(0, 8); more = {8: b0[:4], 10: b0[4:8], 12: b0[8:12], 14: b0[12:]}
    if cfg.early:
        b1 = b_round(1, 8); b1[0].insert(0, I('@wait m0')); more.update({24: b1[:4], 26: b1[4:10], 28: b1[10:]})
    extra = lambda st: [f'v_add_u32 {v(vWD[q])}, 128, {v(vWD[q])}' for q in range(2)]
    pre, groups, first = build_spine('TTTS', vXR, True, vXD, (vRS, vSQ), single=(vSD, vSR), jobs_extra=extra, more=more)
    S = Sched(groups, first)
    KC = 37
    S.insert(128, corr(3, 'T', 1)); S.insert(96, corr(2, 'T')); S.insert(64, corr(1, 'T')); S.insert(KC, corr(0, 'T'))
    fin = stats_final(vSX, vS4, vS5, True, vD, vR); fin2 = []
    for u in range(2):
        c1 = -2*LOG2E*math.sqrt(2/math.pi)
        fin2 += [f'v_mul_f32 {v(vK1[u])}, {fl(c1)}, {v(vR[u])}', f'v_mul_f32 {v(vR[u])}, {v(vR[u])}, {v(vR[u])}',
                 f'v_mul_f32 {v(vK2[u])}, {fl(0.044715)}, {v(vK1[u])}', f'v_mul_f32 {v(vK2[u])}, {v(vK2[u])}, {v(vR[u])}']
    S.fill(31, 32, build_F(CS_SM, vB1[0]))
    S.fill(30, 33, stats_partial(vRS, vSQ, vSX, vS4), skip=1)
    S.fill(33, KC, fin, cut=2)
    S.fill(KC, KC, fin2, skip=-2)
    for st in (1, 2, 3): S.fill(32*st+31, 32*st+32, build_F(CS_SM, vB1[st]), cut=1 if st == 3 else 2)
    S.fill(70, 72, [I(f'buffer_load_dword {v(vRDY)}, off, {DBG}, 0 sc1')])
    if cfg.early: S.fill(81, 92, b_move(0, 8, breg))
    for st in range(3):
        gl = []
        for u in range(2):
            gl += gelu(vACC[st & 1][u], vK1[u], vK2[u], vD[u], vG, vPK, None, sST[u], False)
            gl.append(f's_add_u32 {sST[u]}, {sST[u]}, 8192')
        if st == 0: S.fill(KC, 64, gl)
        else: S.fill(32*st + 32, 32*st + 64, gl, skip=2)
    for i in pre: e(i)
    stamp(s, 1)
    S.emit(s, 'ffn')
    stamp(s, 5)
    e('s_barrier')
    tail = [mk(i) for i in gelu(vACC[1][0], vK1[0], vK2[0], vD[0], vG, vPK, None, 's91', True)]
    return phase2(s, 'f', breg, tail)

def att(s):
    e = s.e; al = Alloc(COMMON_END)
    NH = 4
    vHR = [al(), al()]; vSX = al(); vD = [al(), al()]; vRC = [al(), al()]; vKHA = al(); vTA = al()
    vHF = al(4*NH, 2); vHA = vCS
    vQ = [al(8, 2), al(8, 2)]; vK = [al(8, 2), al(8, 2)]; vKH = [al(4, 2), al(4, 2)]
    vMK = al(24, 2); vAM = al(10, 2); vRK = [al(4), al(4)]; vPP = al(8, 2); vE = al(8, 2)
    vXD = [vK[0] + i for i in range(4)]; vXR = [vK[0] + 4 + i for i in range(4)]
    vRS = [vK[1], vK[1] + 4]; vSQ = [vKH[0], vKH[1], vPP, vPP + 4]; vS4 = vE; vS5 = vE + 4
    e('L_att:')
    e(f's_lshl_b32 s99, {sN}, 7'); e('s_mov_b32 s14, 1572864')
    xw_setup(s, 3072, vXD, 's99')
    t0, t1, t2, t3 = [v(x) for x in vT[:4]]
    hx = vACC[1][1]
    e(f's_lshl_b32 s77, {sMT}, 7'); e(f's_lshl_b32 s82, {sCG}, 3'); e('s_add_u32 s77, s77, s82'); e(f's_add_u32 s77, s77, {sP}'); e('s_sub_u32 s77, s77, 16'); e('s_lshl_b32 s77, s77, 10')
    e(f'v_lshrrev_b32 {t0}, 4, v0'); e(f'v_and_b32 {t1}, 15, v0'); e(f'v_lshlrev_b32 {t1}, 4, {t1}')
    e(f'v_lshl_add_u32 {v(vD[0])}, {t0}, 11, {t1}'); e(f'v_add_u32 {v(vD[0])}, s77, {v(vD[0])}')
    start_loads(s)
    e('s_mov_b32 s12, s78'); e('s_mov_b32 s13, s79')
    hl = [[I(f'buffer_load_dwordx4 {v(hx + 4*i, 4)}, {v(vD[0])}, {X}, 0 offen offset:{256*i}')] for i in range(4)]
    r = Rec(); e = r.e
    clear_flags(r)
    read_setup(r, vXR, False)
    e(f'v_bfe_u32 {t0}, v0, 3, 1'); e(f'v_and_b32 {t1}, 3, v0'); e(f'v_lshl_add_u32 {t0}, {t0}, 2, {t1}')
    e(f's_lshl_b32 s77, {sP}, 3'); e(f'v_add_u32 {t0}, s77, {t0}')
    e(f'v_bfe_u32 {t1}, v0, 4, 1'); e(f'v_bfe_u32 {t2}, v0, 2, 1'); e(f'v_cmp_eq_u32 vcc, {t1}, {t2}')
    e(f'v_cndmask_b32 {t0}, 16, {t0}, vcc'); e(f'v_mul_u32_u24 {t0}, {HROW}, {t0}')
    e(f'v_lshrrev_b32 {t1}, 5, v0'); e(f'v_lshl_add_u32 {t0}, {t1}, 4, {t0}')
    e(f's_lshl_b32 s77, {sCG}, 6'); e(f's_add_u32 s82, s77, {L_H}'); e(f'v_add_u32 {v(vHR[0])}, s82, {t0}')
    e(f's_sub_u32 s82, {L_H + 64}, s77'); e(f'v_add_u32 {v(vHR[1])}, s82, {t0}')
    z = vACC[1][0]
    e(f'v_add_u32 {t0}, {L_H + 16*HROW}, {v(vL16)}'); e(I(f'ds_write_b128 {t0}, {v(z, 4)}', 'st'))
    e(f'v_and_b32 {t0}, 31, v0'); e(f'v_lshlrev_b32 {t1}, 2, {t1}'); e(f'v_sub_u32 {t1}, {t0}, {t1}'); e(f'v_mov_b32 {t3}, {fl(NEG)}')
    e(f's_lshl_b32 s77, {sW}, 9'); e(f's_add_u32 s82, s77, {L_R + 32}')
    e(f'v_lshl_add_u32 {v(vTA)}, {t0}, 2, s82')
    e(f's_cmp_eq_u32 {sMT}, 0'); e(f's_cselect_b32 s3, {fl(NEG)}, 0')
    e(f'v_mov_b32 {v(vT[4])}, 0xffff'); e(f'v_mov_b32 {v(vT[5])}, 0xffff0000')
    for i in range(4):
        e(f'v_subrev_u32 {t2}, {i}, {t1}')
        e(f'v_and_b32 {v(vRK[0]+i)}, 7, {t2}'); e(f'v_lshlrev_b32 {v(vRK[0]+i)}, 2, {v(vRK[0]+i)}'); e(f'v_sub_u32 {v(vRK[0]+i)}, {v(vTA)}, {v(vRK[0]+i)}')
        e(f'v_ashrrev_i32 {t2}, 3, {t2}')
        for j in range(-1, 4):
            e(f'v_cmp_eq_u32 vcc, {j}, {t2}')
            m = vMK + (16 + i if j < 0 else 4*j + i); am = vAM + 2*(j+1) + (i >> 1)
            e(f'v_cndmask_b32 {v(m)}, {t3}, {v(z)}, vcc')
            if i % 2 == 0: e(f'v_cndmask_b32 {v(am)}, 0, {v(vT[4])}, vcc')
            else:
                e(f'v_cndmask_b32 {v(vT[6])}, 0, {v(vT[5])}, vcc'); e(f'v_or_b32 {v(am)}, {v(am)}, {v(vT[6])}')
        e(f'v_min_f32 {v(vMK+20+i)}, s3, {v(vMK+16+i)}')
    e(f'v_mov_b32 {t2}, 1.0'); e(f'v_subrev_u32 {t3}, 32, {v(vTA)}'); e(f'ds_write_b32 {t3}, {t2}')
    e(f's_add_u32 s82, s77, {L_KH}')
    e(f'v_lshrrev_b32 {t1}, 5, v0'); e(f'v_lshlrev_b32 {t2}, 1, {t0}'); e(f'v_lshl_add_u32 {t2}, {t1}, 8, {t2}'); e(f'v_add_u32 {v(vKHA)}, s82, {t2}')
    e(f's_mov_b32 s91, s82')
    e(f's_lshl_b32 s77, {sN}, 13'); e(f's_lshl_b32 s82, {sCG}, 12'); e('s_add_u32 s77, s77, s82'); e(f's_lshl_b32 s82, {sP}, 10'); e('s_add_u32 s77, s77, s82')
    e(f's_mul_i32 {sST[0]}, {sMT}, {2*BS}'); e(f's_add_u32 {sST[0]}, {sST[0]}, s77'); e(f's_add_u32 {sST[1]}, {sST[0]}, {BS}')
    e(f's_lshl_b32 {sFL}, {sMT}, 4'); e(f's_add_u32 {sFL}, {sFL}, {sN}'); e(f's_add_u32 {sFL}, {sFL}, 8')
    e(f'v_add_u32 {v(vSX)}, {sSL}, {v(vL16)}'); e(f'v_add_u32 {v(vSX)}, {L_ST}, {v(vSX)}')
    for q in vRS + vSQ:
        for i in range(4): e(f'v_mov_b32 {v(q+i)}, 0')
    p2_setup(r)
    first_units = xjob(0, vXD) + wjob(0) + (wjob(1) if cfg.p1split == 4 else xjob(1, vXD))
    weave(s, first_units, r.l, 10)
    for u in hl:
        for i in u: s.e(i)
    r = Rec(); e = r.e
    S_, Q_, one = v(vT[0]), v(vT[1]), v(vT[2])
    e(f'v_mov_b32 {one}, 0x3f803f80'); e(f'v_mov_b32 {S_}, 0'); e(f'v_mov_b32 {Q_}, 0')
    for i in range(16):
        e(f'v_dot2c_f32_bf16 {S_}, {v(hx+i)}, {one}'); e(f'v_dot2c_f32_bf16 {Q_}, {v(hx+i)}, {v(hx+i)}')
    for q in (8, 4, 2, 1):
        e(f'v_add_f32_dpp {S_}, {S_}, {S_} row_ror:{q} row_mask:0xf bank_mask:0xf')
        e(f'v_add_f32_dpp {Q_}, {Q_}, {Q_} row_ror:{q} row_mask:0xf bank_mask:0xf')
    hr, hb = vHF, vHF + 2
    for i in stats_scalars(S_, Q_, v(vT[3]), v(hb), v(vT[4]), v(vT[5]), v(hr)): e(i)
    e(f'v_and_b32 {v(hb)}, 0xffff0000, {v(hb)}'); e(f'v_mul_f32 {v(hb)}, {v(hb)}, {v(hr)}')
    e(f'v_lshrrev_b32 {t0}, 4, v0'); e(f's_lshl_b32 s77, {sCG}, 2'); e(f'v_add_u32 {t0}, s77, {t0}'); e(f'v_cmp_eq_u32 vcc, 0, {t0}')
    e(f'v_cndmask_b32 {v(hr)}, {v(hr)}, {v(z)}, vcc'); e(f'v_mov_b32 {t1}, 1.0'); e(f'v_cndmask_b32 {v(hb)}, {v(hb)}, {t1}, vcc')
    e(f's_lshl_b32 s77, {sP}, 3'); e(f'v_add_u32 {t0}, s77, {t0}'); e(f'v_mul_u32_u24 {t0}, {HROW}, {t0}'); e(f'v_add_u32 {t0}, {L_H}, {t0}')
    e(f'v_and_b32 {t1}, 15, v0'); e(f'v_lshlrev_b32 {t1}, 4, {t1}'); e(f'v_subrev_u32 {t1}, {sXO[0]}, {t1}')
    u0 = vHF + 4
    for i in range(4):
        for k in range(4):
            q = hx + 4*i + k
            e(f'v_lshlrev_b32 {v(u0+2*k)}, 16, {v(q)}'); e(f'v_and_b32 {v(u0+2*k+1)}, 0xffff0000, {v(q)}')
        for k in range(4): e(f'v_pk_fma_f32 {v(u0+2*k, 2)}, {v(u0+2*k, 2)}, {v(hr, 2)}, {v(hb, 2)} op_sel_hi:[1,0,0]')
        for k in range(4): e(f'v_cvt_pk_bf16_f32 {v(hx+4*i+k)}, {v(u0+2*k)}, {v(u0+2*k+1)}')
        e(f'v_add_u32 {t2}, {256*i}, {t1}'); e(f'v_and_b32 {t2}, 1023, {t2}'); e(f'v_add_u32 {t2}, {t0}, {t2}')
        e(I(f'ds_write_b128 {t2}, {v(hx+4*i, 4)}', 'st'))
    us = (xjob(1, vXD) if cfg.p1split == 4 else wjob(1)) + (xjob(2, vXD) + wjob(2))[:cfg.pre2]
    weave(s, us[:4], r.l[:3], 1); weave(s, us[4:], r.l[3:], 20)
    e = s.e
    stamp(s, 0)
    breg = staging([128*(i & 1) + 4*(i >> 1) for i in range(16)])
    b0 = b_round(0, 8); more = {8: b0[:4], 10: b0[4:8], 12: b0[8:12], 14: b0[12:]}
    if cfg.early:
        b1 = b_round(1, 8); b1[0].insert(0, I('@wait m0')); more.update({20: b1[:8], 22: b1[8:]})
    extra = lambda st: [f'v_add_u32 {v(vWD[q])}, 1024, {v(vWD[q])}' for q in range(2)]
    halo = dict(f=vHF, n=NH, ad=vHR, acc=vHA)
    pre, groups, first = build_spine('TTN', vXR, False, vXD, (vRS, vSQ), halo=halo, jobs_extra=extra, more=more)
    S = Sched(groups, first)
    KC = 38
    sc, sp = vACC[1][0], vACC[1][1]
    KS = [68, 71, 81, 84]
    S.insert(96, corr(2, 'N'))
    for n in (3, 2, 1, 0):
        u, hd = n >> 1, n & 1
        q = v(vQ[u] + 4*hd, 4); kp = v(vK[0] + 4*hd, 4) if u else v(vKH[hd], 4)
        S.insert(KS[n], [G([f'{M32} {v(sc, 16)}, {v(vK[u] + 4*hd, 4)}, {q}, {v(vMK, 16)}']),
                         G([f'{M32} {v(sp, 16)}, {kp}, {q}, {v(vMK + (4 if u else 8), 16)}'])])
    S.insert(64, corr(1, 'T')); S.insert(KC, corr(0, 'T'))
    fin = stats_final(vSX, vS4, vS5, False, vD, vRC)
    S.fill(31, 32, build_F(CS_SM))
    S.fill(30, 33, stats_partial(vRS, vSQ, vSX, vS4), skip=1)
    S.fill(33, KC, fin, skip=1, cut=2)
    if cfg.early:
        mv = b_move(0, 8, breg)
        S.fill(68, 72, mv[:17]); S.fill(72, 77, mv[17:])
    l = [f'ds_write_b32 {v(vTA)}, {v(vRC[0])}', f'ds_write_b32 {v(vTA)}, {v(vRC[1])} offset:128']
    for u in range(2): l.append(f'v_mul_f32 {v(vRC[u])}, {fl(0.25*LOG2E)}, {v(vRC[u])}')
    for u in (1, 0):
        for i in range(4): l.append(f'ds_read_b32 {v(vRK[u]+i)}, {v(vRK[0]+i)} offset:{128*u}')
    for u in range(2):
        for i in range(8): l.append(f'v_cvt_pk_bf16_f32 {v(vQ[u]+i)}, {v(vACC[0][u]+2*i)}, {v(vACC[0][u]+2*i+1)}')
    for u in range(2):
        for i in range(4): l.append(f'v_mul_f32 {v(vRK[u]+i)}, {v(vRK[u]+i)}, {v(vRC[u])}')
    S.fill(KC, 50, l, skip=3)
    S.fill(56, 58, [I(f'buffer_load_dword {v(vRDY)}, off, {DBG}, 0 sc1')])
    cs_h = [f'v_mov_b32 {v(vT[0])}, {v(vHA)}']
    kh = [f'v_cvt_pk_bf16_f32 {v(vE)}, {v(vHA)}, {v(vHA+1)}', f'v_cvt_pk_bf16_f32 {v(vE+1)}, {v(vHA+2)}, {v(vHA+3)}']
    S.fill(63, 64, build_F(cs_h) + kh, skip=2, cut=2)
    vVH = vE + 4
    vh = [f'v_cvt_pk_bf16_f32 {v(vVH+2)}, {v(vHA)}, {v(vHA+1)}', f'v_cvt_pk_bf16_f32 {v(vVH+3)}, {v(vHA+2)}, {v(vHA+3)}',
          f'v_mov_b32 {v(vVH)}, 0', f'v_mov_b32 {v(vVH+1)}, 0']
    S.fill(95, 96, build_F(cs_h) + vh, skip=2, cut=2)
    l = [f'ds_write_b16 {v(vKHA)}, {v(vE)}', f'ds_write_b16_d16_hi {v(vKHA)}, {v(vE)} offset:64',
         f'ds_write_b16 {v(vKHA)}, {v(vE+1)} offset:128', f'ds_write_b16_d16_hi {v(vKHA)}, {v(vE+1)} offset:192',
         f'v_and_b32 {t2}, 7, v0', f'v_lshrrev_b32 {t3}, 5, v0', f'v_lshlrev_b32 {t3}, 3, {t3}', f'v_lshl_add_u32 {t2}, {t2}, 6, {t3}', f'v_add_u32 {t2}, s91, {t2}',
         f'ds_read2_b64 {v(vKH[0], 4)}, {t2} offset0:0 offset1:2', f'ds_read2_b64 {v(vKH[1], 4)}, {t2} offset0:4 offset1:6']
    for u in range(2):
        for i in range(8): l.append(f'v_cvt_pk_bf16_f32 {v(vK[u]+i)}, {v(vACC[1][u]+2*i)}, {v(vACC[1][u]+2*i+1)}')
    S.fill(64, KS[0], l, skip=-2, cut=2)
    mA, mB, mC = v(vT[2]), v(vT[3]), v(vT[4])
    for u in range(2):
        def merge(hd):
            q = []
            for i in range(4): q.append(f'v_max3_f32 {v(vE+4*hd+i)}, {v(sc+i)}, {v(sc+4+i)}, {v(sc+8+i)}')
            for i in range(4): q.append(f'v_max3_f32 {v(vE+4*hd+i)}, {v(vE+4*hd+i)}, {v(sc+12+i)}, {v(sp+12+i)}')
            return q
        S.fill(KS[2*u], KS[2*u+1], merge(0), skip=3, cut=2)
        l = merge(1)
        for n in range(8): l.append(f'v_mul_f32 {v(vE+n)}, {v(vE+n)}, {v(vRK[u] + (n & 3))}')
        l += [f'v_max3_f32 {mA}, {v(vE)}, {v(vE+1)}, {v(vE+2)}', f'v_max3_f32 {mB}, {v(vE+4)}, {v(vE+5)}, {v(vE+6)}',
              f'v_max_f32 {mA}, {mA}, {v(vE+3)}', f'v_max_f32 {mB}, {mB}, {v(vE+7)}',
              f'v_permlane32_swap_b32 {mA}, {mB}', f'v_max_f32 {mB}, {mA}, {mB}', f'v_mov_b32 {mA}, {mB}', f'v_permlane32_swap_b32 {mA}, {mB}']
        for n in range(8): l.append(f'v_sub_f32 {v(vE+n)}, {v(vE+n)}, {mA if n < 4 else mB}')
        for n in range(8): l.append(f'v_exp_f32 {v(vE+n)}, {v(vE+n)}')
        l += [f'v_add_f32 {mA}, {v(vE)}, {v(vE+1)}', f'v_add_f32 {mB}, {v(vE+4)}, {v(vE+5)}', f'v_add_f32 {mA}, {mA}, {v(vE+2)}', f'v_add_f32 {mB}, {mB}, {v(vE+6)}',
              f'v_add_f32 {mA}, {mA}, {v(vE+3)}', f'v_add_f32 {mB}, {mB}, {v(vE+7)}']
        for n in range(4): l.append(f'v_mul_f32 {v(vE+n)}, {v(vE+n)}, {v(vRK[u] + n)}')
        l += [f'v_permlane32_swap_b32 {mA}, {mB}', f'v_add_f32 {mB}, {mA}, {mB}', f'v_mul_f32 {mB}, {mB}, {v(vRC[u])}', f'v_rcp_f32 {mB}, {mB}']
        for n in range(4, 8): l.append(f'v_mul_f32 {v(vE+n)}, {v(vE+n)}, {v(vRK[u] + (n & 3))}')
        l += [f'v_mov_b32 {mA}, {mB}', f'v_permlane32_swap_b32 {mA}, {mB}']
        for n in range(8): l.append(f'v_mul_f32 {v(vE+n)}, {v(vE+n)}, {mA if n < 4 else mB}')
        for n in range(4): l.append(f'v_cvt_pk_bf16_f32 {v(vPP+4*u+n)}, {v(vE+2*n)}, {v(vE+2*n+1)}')
        S.fill(KS[2*u+1], KS[2] if u == 0 else 95, l, skip=3, cut=-3 if u == 0 else 0)
    for i in pre: e(i)
    stamp(s, 1)
    S.emit(s, 'att')
    stamp(s, 5)
    e('s_barrier')
    pe = [vWF, vWF + 12]
    def expand(n):
        b = pe[n & 1]; q = []
        if n < 2: q += [f'v_mov_b32 {v(b)}, 0', f'v_mov_b32 {v(b+1)}, 0']
        for m in range(10): q.append(f'v_and_b32 {v(b+2+m)}, {v(vPP + 2*n + (m & 1))}, {v(vAM+m)}')
        return q
    r = Rec(); e = r.e
    for i in expand(0) + expand(1): e(i)
    for u in range(2):
        for i in range(8): e(f'v_cvt_pk_bf16_f32 {v(vQ[u]+i)}, {v(vACC[0][u]+2*i)}, {v(vACC[0][u]+2*i+1)}')
    od = [vACC[1][0], vACC[1][1], vACC[0][0], vACC[0][1]]
    def pv(n):
        u = n >> 1; b = pe[n & 1]; d = v(od[n], 16)
        prev = v(vQ[0] + 4, 4) if u else v(vVH, 4)
        return [G([f'{M32} {d}, {prev}, {v(b, 4)}, 0']), G([f'{M32} {d}, {v(vQ[u], 4)}, {v(b+4, 4)}, {d}']), G([f'{M32} {d}, {v(vQ[u]+4, 4)}, {v(b+8, 4)}, {d}'])]
    def ostore(n):
        u, hd = n >> 1, n & 1; o = vK[0] + 4*n; o += (-o) % 2
        q = [f'v_cvt_pk_bf16_f32 {v(o+i)}, {v(od[n] + 8*hd + 2*i)}, {v(od[n] + 8*hd + 2*i + 1)}' for i in range(4)]
        return q + [I(f'buffer_store_dwordx4 {v(o, 4)}, {v(vL16)}, {WS}, {sST[u]} offen offset:{2048*hd} sc1', 'h')]
    gs = pv(0) + interleave(pv(1), expand(2)) + interleave(pv(2), expand(3) + ostore(0)) + interleave(pv(3), ostore(1))
    for g in gs:
        for i in g.all(): e(i)
    for i in ostore(2) + ostore(3): e(i)
    return phase2(s, 'a', breg, r.l)

def phase2(s, pfx, breg, tail):
    e = s.e; al = Alloc(vIDX)
    vA = [al(), al()]; vRA = [al() for _ in range(3)]; vOA = al(); vWA = al()
    acc = [al(16, 2) for _ in range(4)]
    vX = al(8, 2); vB2 = al(16, 2)
    NA = cfg.AD + 1
    vAR = al(8*NA, 2); vS = al(16, 2)
    assert al.n <= P2_BV
    t0, t1, t2, t3 = [v(x) for x in vT[:4]]
    R = 1 if cfg.early else 0
    def units(z, us):
        for u in us:
            for i in u: z.e(i)
    nxt = b_round(R+1, 8)
    for i in tail: e(i)
    stamp(s, 6)
    units(s, nxt[:cfg.prepub])
    for i in b_move(R, 8, breg): e(i)
    e('@wait h')
    e(f'v_readfirstlane_b32 s3, {v(vRDY)}'); e('s_cmp_lg_u32 s3, 0'); e(f's_cbranch_scc1 L_{pfx}_rdy')
    e(f's_mov_b32 s82, {cfg.spin}')
    keep = list(s.vm)
    e(f'L_{pfx}_rspin:')
    e(f'buffer_load_dword {v(vRDY)}, off, {DBG}, 0 sc1')
    e('s_sub_u32 s82, s82, 1'); e(f's_cbranch_scc1 L_{pfx}_rdy')
    e(f'v_readfirstlane_b32 s3, {v(vRDY)}'); e('s_cmp_eq_u32 s3, 0'); e(f's_cbranch_scc1 L_{pfx}_rspin')
    e(f'L_{pfx}_rdy:')
    s.vm = keep
    e(f's_lshl_b32 {sFL}, {sFL}, 8'); e(f's_lshl_b32 s3, {sW}, 2'); e(f's_add_u32 {sFL}, {sFL}, s3'); e(f's_add_u32 {sFL}, {sFL}, {FLAG}')
    e(f'v_mov_b32 {t0}, 1'); e('s_mov_b64 exec, 1')
    e(f'buffer_store_dword {t0}, off, {WS}, {sFL} sc1')
    e('s_mov_b64 exec, -1')
    stamp(s, 7)
    r = Rec(); e = r.e
    e(f's_lshl_b32 s3, {sP}, 10'); e(f'v_add_u32 {v(vA[0])}, s3, {v(vL16)}'); e(f'v_xor_b32 {v(vA[1])}, 1024, {v(vA[0])}')
    e(f's_lshl_b32 s3, {sNT}, 7'); e(f's_lshl_b32 s77, {sCG}, 6'); e('s_add_u32 s3, s3, s77')
    e(f'v_and_b32 {t0}, 32, v0'); e(f'v_add_u32 {t0}, s3, {t0}')
    e(f's_lshl_b32 s77, {sBLK}, 6'); e(f's_add_u32 s77, s77, {sP}'); e('s_lshl_b32 s77, s77, 10')
    e(f'v_and_b32 {t1}, 31, v0'); e(f'v_lshlrev_b32 {t1}, 11, {t1}'); e(f'v_add3_u32 {v(vOA)}, {t0}, {t1}, s77')
    for h in range(2): e(f'buffer_load_dwordx4 {v(vS + 4*h, 4)}, {t0}, {B2}, 0 offen offset:{16*h}')
    for h in range(2): e(f'buffer_load_dwordx4 {v(vX + 4*h, 4)}, {v(vOA)}, {X}, 0 offen offset:{16*h}')
    e(f's_add_u32 s3, {sQ}, {L_X}'); e(f'v_add_u32 {v(vWA)}, s3, {v(vL16)}')
    for i in range(3):
        e(f's_cmp_gt_u32 {sW}, {i}'); e(f's_cselect_b32 s3, {i}, {i+1}'); e(f's_xor_b32 s77, s3, {sW}'); e('s_lshl_b32 s77, s77, 12')
        e('s_lshl_b32 s3, s3, 14'); e('s_add_u32 s3, s3, s77'); e(f's_add_u32 s3, s3, {L_X - 4096}'); e(f'v_add_u32 {v(vRA[i])}, s3, {v(vL16)}')
    e(f's_lshr_b32 s3, {sBLK}, 1'); e('s_lshl_b32 s3, s3, 12'); e(f's_add_u32 s91, s3, {FLAG}')
    e(f'v_lshrrev_b32 {t2}, 2, v0'); e(f'v_and_b32 {t3}, 3, v0'); e(f'v_lshlrev_b32 {t3}, 2, {t3}'); e(f'v_lshl_add_u32 {t2}, {t2}, 8, {t3}')
    e(f's_cmp_eq_u32 {sW}, 2'); e('s_mov_b32 s92, 0xfff'); e('s_cselect_b32 s92, 0xffff00, s92'); e(f's_cmp_eq_u32 {sW}, 3'); e('s_cselect_b32 s92, 0xfff00000, s92'); e('s_mov_b32 s93, 0')
    weave(s, nxt[cfg.prepub:], r.l, 8)
    e = s.e
    for q in range(R+2, 4):
        e(f'@wait m{q-2}'); units(s, b_round(q, 8))
        for i in b_move(q-1, 8, breg): e(i)
    for i in range(8):
        e(f'v_lshlrev_b32 {v(vB2+2*i)}, 16, {v(vS+i)}'); e(f'v_and_b32 {v(vB2+2*i+1)}, 0xffff0000, {v(vS+i)}')
    e(f's_cmp_eq_u32 {sW}, 0'); e(f's_cbranch_scc1 L_{pfx}_w0')
    s0 = s.fork()
    outs = [s, s0]
    for w0, z in ((False, s), (True, s0)):
        e = z.e; ns = 32 if w0 else 38; lb = f'L_{pfx}{int(w0)}'
        if w0:
            e(f'L_{pfx}_w0:'); e('s_mov_b32 s92, 0'); e('s_mov_b32 s93, -1')
            for i in b_move(3, 8, breg): e(i)
        else:
            e('@wait m2'); units(z, b_round(4, 6))
            for i in b_move(3, 8, breg): e(i)
            for i in b_move(4, 6, breg): e(i)
        stamp(z, 8)
        e(f's_mov_b64 exec, {sMK}'); e(f's_mov_b32 s82, {cfg.spin}')
        e(f'{lb}_poll:')
        e(f'buffer_load_dword {t3}, {t2}, {WS}, s91 offen sc1')
        e('s_sub_u32 s82, s82, 1'); e(f's_cbranch_scc1 {lb}_go')
        e(f'v_cmp_ne_u32 vcc, 1, {t3}'); e(f's_cbranch_vccnz {lb}_poll')
        e(f'{lb}_go:')
        e('s_mov_b64 exec, -1')
        stamp(z, 9)
        def aload(k):
            if k >= ns: return []
            l = [I(f's_add_u32 {sAO}, {sAO}, 4096'), I(f's_cmp_eq_u32 {sAO}, {sAL}'), I(f's_cselect_b32 {sAO}, 0, {sAO}')] if k % 2 == 0 and k else []
            for u in range(2): l.append(I(f'buffer_load_dwordx4 {v(vAR + 8*(k % NA) + 4*u, 4)}, {v(vA[u])}, {AS}, {sAO} offen offset:{(k & 1)*2048} sc1'))
            return l
        for k in range(cfg.AD):
            for i in aload(k): e(i)
        for k in range(ns):
            ld = aload(k + cfg.AD)
            order = (1, 3, 2, 0) if k == ns - 1 else (0, 2, 1, 3)
            for n, sl in enumerate(order):
                u, b = sl & 1, sl >> 1; d = v(acc[sl], 16)
                dd = v(vS, 16) if (w0 and k == ns - 1 and sl == 0) else d
                e(f'{M32} {dd}, {breg(k, b)}, {v(vAR + 8*(k % NA) + 4*u, 4)}, {d if k else 0}')
                if n == 0:
                    for i in ld[:-1]: e(i)
                if n == 1:
                    for i in ld[-1:]: e(i)
        stamp(z, 10)
        for sl in (1, 3, 2):
            for j in range(4): e(I(f'ds_write_b128 {v(vWA)}, {v(acc[sl] + 4*j, 4)} offset:{(sl-1)*4096 + j*1024}', 'r'))
        xs = vAR
        for i in range(8):
            e(f'v_lshlrev_b32 {v(xs+2*i)}, 16, {v(vX+i)}'); e(f'v_and_b32 {v(xs+2*i+1)}, 0xffff0000, {v(vX+i)}')
        e('@wait r'); e('s_barrier')
        dst = [acc[0] if w0 else vS, acc[1], acc[2]]
        for j in range(4):
            for i in ((0, 1, 2) if w0 else (1, 2, 0)): e(f'ds_read_b128 {v(dst[i] + 4*j, 4)}, {v(vRA[i])} offset:{j*1024}')
        g, tt, o = acc[0], acc[3], vX
        c2 = vAR + 16
        e(f'v_mov_b32 {v(c2)}, {fl(-LOG2E)}'); e(f'v_mov_b32 {v(c2+2)}, 1.0')
        for h in range(2):
            P = [8*h + 2*i for i in range(4)]
            for i in P: e(f'v_pk_add_f32 {v(g+i, 2)}, {v(g+i, 2)}, {v(vB2+i, 2)}')
            for i in P: e(f'v_pk_add_f32 {v(acc[1]+i, 2)}, {v(acc[1]+i, 2)}, {v(acc[2]+i, 2)}')
            for i in P: e(f'v_pk_add_f32 {v(g+i, 2)}, {v(g+i, 2)}, {v(acc[1]+i, 2)}')
            for i in P: e(f'v_pk_mul_f32 {v(tt+i, 2)}, {v(g+i, 2)}, {v(c2, 2)} op_sel_hi:[1,0]')
            for i in range(8*h, 8*h+8): e(f'v_exp_f32 {v(tt+i)}, {v(tt+i)}')
            for i in P: e(f'v_pk_add_f32 {v(tt+i, 2)}, {v(tt+i, 2)}, {v(c2+2, 2)} op_sel_hi:[1,0]')
            for i in P: e(f'v_pk_mul_f32 {v(g+i, 2)}, {v(g+i, 2)}, {v(vS+i, 2)}')
            for i in range(8*h, 8*h+8): e(f'v_rcp_f32 {v(tt+i)}, {v(tt+i)}')
            for i in P: e(f'v_pk_fma_f32 {v(g+i, 2)}, {v(g+i, 2)}, {v(tt+i, 2)}, {v(xs+i, 2)}')
            for i in P: e(f'v_cvt_pk_bf16_f32 {v(o + i//2)}, {v(g+i)}, {v(g+i+1)}')
            e(f'buffer_store_dwordx4 {v(o + 4*h, 4)}, {v(vOA)}, {OUT}, 0 offen offset:{16*h} {cfg.out_flags}')
        stamp(z, 11)
        if cfg.stamps or cfg.rt:
            keep = cfg.stamps; cfg.stamps = True
            e('s_waitcnt vmcnt(0)'); stamp(z, 12); cfg.stamps = keep
            e(f's_memrealtime {sTS}'); e('s_waitcnt lgkmcnt(0)')
            for k, r in ((13, 's100'), (14, 's94')):
                e(f'v_mov_b32 {v(vSTA)}, {r}'); e(f'buffer_store_dword {v(vSTA)}, off, {WS}, {sSO} offset:{4*k}')
        e('s_endpgm')
    return outs

HEADER = open('cdna_kernels/%s.s.ref' % KN[:-7]).read().split('; Override launch')[0] if len(sys.argv) >= 0 else ''
def generate(code_bytes=65536):
    s = Stream(); prologue(s, code_bytes)
    sa = s.fork()
    streams = ffn(s) + att(sa)
    body = ''.join(x.text() for x in streams)
    info = [(len([i for i in x.out if i.kind != 'meta']), x.nops, x.waits) for x in streams]
    txt = HEADER + f'''; @launch grid=(256,1,1) block=(256,1,1) lds={LDS_BYTES}
.amdgcn_target "amdgcn-amd-amdhsa--gfx950"
.text
.globl {KN}
.p2align 8
.type {KN},@function
{KN}:
{body}L_exit:
    s_endpgm
L_code_end:
.section .rodata,"a"
.p2align 6
.amdhsa_kernel {KN}
  .amdhsa_next_free_vgpr 512
  .amdhsa_next_free_sgpr 102
  .amdhsa_accum_offset 256
  .amdhsa_group_segment_fixed_size 0
  .amdhsa_kernarg_size 88
  .amdhsa_user_sgpr_count 2
  .amdhsa_user_sgpr_kernarg_segment_ptr 1
  .amdhsa_system_sgpr_workgroup_id_x 1
.end_amdhsa_kernel
'''
    return txt, info

if __name__ == '__main__':
    out = sys.argv[1]
    for kv in sys.argv[2:]:
        k, val = kv.split('=', 1)
        setattr(cfg, k, eval(val))
    txt, info = generate(f'L_code_end - {KN} - 128')
    open(out, 'w').write(txt)
    print('streams (instr, nop states, waits):', info, file=sys.stderr)
```

```python
import re, copy

REG = re.compile(r'^(-|\|)?(?:abs\()?([vas])(?:(\d+)|\[(\d+):(\d+)\])\)?\|?$')
def regs_of(op):
    op = op.strip()
    if op in ('vcc', 'exec', 'm0', 'scc'): return {op}
    if op in ('vcc_lo', 'vcc_hi'): return {'vcc'}
    if op in ('exec_lo', 'exec_hi'): return {'exec'}
    m = REG.match(op)
    if not m: return set()
    f = m.group(2)
    if m.group(3) is not None: return {f + m.group(3)}
    return {f + str(i) for i in range(int(m.group(4)), int(m.group(5)) + 1)}

TRANS = ('v_exp_f32', 'v_rcp_f32', 'v_rsq_f32', 'v_sqrt_f32', 'v_log_f32')
PASSES = {'v_mfma_f32_32x32x16_bf16': 8, 'v_mfma_f32_16x16x32_bf16': 4, 'v_mfma_f32_4x4x4_16b_bf16': 2,
          'v_smfmac_f32_16x16x64_bf16': 4}

class I:
    def __init__(self, text, tag=None, m0=None):
        self.text = text.strip(); self.tag = tag; self.m0 = m0
        t = self.text.split(';')[0].strip()
        self.label = t.endswith(':'); self.directive = t.startswith('.')
        self.pseudo = t.startswith('@')
        parts = t.split(None, 1)
        self.op = parts[0] if parts else ''
        base = re.sub(r'_(e32|e64|dpp|sdwa)$', '', self.op); self.base = base
        rest = parts[1] if len(parts) > 1 else ''
        toks = []; depth = 0; cur = ''
        for ch in rest:
            if ch == '[': depth += 1
            if ch == ']': depth -= 1
            if ch == ',' and depth == 0: toks.append(cur.strip()); cur = ''
            else: cur += ch
        if cur.strip(): toks.append(cur.strip())
        mods = ''
        if toks:
            last = toks[-1].split(None, 1)
            toks[-1] = last[0]; mods = last[1] if len(last) > 1 else ''
        self.ops = toks; self.mods = mods
        self.rd = set(); self.wr = set(); self.kind = 'other'
        self.srcA = self.srcB = self.srcC = set(); self.passes = 0
        self.dma = False; self.store_data = set()
        R = [regs_of(x) for x in toks]
        allr = lambda l: set().union(*l) if l else set()
        if self.label or self.directive or self.pseudo or not self.op: self.kind = 'meta'
        elif base in PASSES:
            self.kind = 'mfma'; self.passes = PASSES[base]
            self.wr = R[0]; self.srcA = R[1]; self.srcB = R[2]
            if base.startswith('v_smfmac'): self.srcC = R[0]; self.srcB = R[2] | R[3]
            else: self.srcC = R[3]
            self.rd = self.srcA | self.srcB | self.srcC
        elif base.startswith('v_'):
            self.kind = 'trans' if base in TRANS else 'valu'
            if base.startswith('v_permlane') or base == 'v_swap_b32': self.wr = R[0] | R[1]; self.rd = R[0] | R[1]
            elif base.startswith('v_cmp'): self.wr = R[0]; self.rd = allr(R[1:])
            elif base in ('v_add_co_u32', 'v_addc_co_u32'): self.wr = R[0] | R[1]; self.rd = allr(R[2:])
            else:
                self.wr = R[0]; self.rd = allr(R[1:])
                if base in ('v_fmac_f32', 'v_dot2c_f32_bf16') or 'dpp' in self.op or 'row_' in mods or 'quad_perm' in mods: self.rd |= R[0]
            self.dpp = 'dpp' in self.op
        elif base.startswith('ds_'):
            self.kind = 'ds'
            if base.startswith('ds_read') or base.startswith('ds_bpermute'): self.wr = R[0]; self.rd = allr(R[1:])
            else: self.rd = allr(R)
        elif base.startswith('buffer_'):
            self.kind = 'vmem'
            if 'lds' in mods.split(): self.dma = True; self.rd = allr(R) | {'m0'}
            elif base.startswith('buffer_load'):
                self.wr = R[0]; self.rd = allr(R[1:])
                if 'd16' in base: self.rd |= R[0]
            elif base in ('buffer_inv', 'buffer_wbl2'): pass
            else:
                self.rd = allr(R)
                if base.endswith('x4') or base.endswith('x3'): self.store_data = R[0]
        elif base.startswith('s_load') or base in ('s_memtime', 's_memrealtime'):
            self.kind = 'smem'; self.wr = R[0]; self.rd = allr(R[1:])
        elif base.startswith('s_'):
            self.kind = 'salu'
            if base.startswith('s_cmp') or base.startswith('s_cbranch') or base in ('s_branch', 's_barrier', 's_waitcnt', 's_nop', 's_sleep', 's_setprio', 's_endpgm'):
                self.rd = allr(R)
                if 'vcc' in base: self.rd |= {'vcc'}
            else:
                self.wr = R[0]; self.rd = allr(R[1:])
                if 'saveexec' in base: self.wr |= {'exec'}
        else:
            raise ValueError('unknown instruction ' + self.text)
    def states(self):
        if self.kind == 'meta': return 0
        if self.base == 's_nop': return int(self.ops[0]) + 1
        return 1
    def cost(self):
        if self.kind == 'meta': return 0
        if self.kind == 'trans': return 2
        if self.kind == 'vmem': return 2.5 if self.m0 else 2
        if self.kind == 'mfma': return 3 if self.base.startswith('v_smfmac') else 2
        if self.base == 's_barrier': return 4
        if self.base == 'ds_write_b128': return 6
        return 1
    def pipe(self):
        return (2.25 if self.passes == 2 else self.passes)

def need_states(p, c):
    n = 0
    vg = lambda s: {r for r in s if r[0] in 'va' and r != 'vcc'}
    sg = lambda s: {r for r in s if r[0] == 's' or r == 'vcc'}
    if p.kind in ('valu', 'trans'):
        w = vg(p.wr)
        if c.kind == 'mfma' and w & c.rd: n = max(n, 2)
        if c.kind in ('valu', 'trans'):
            if c.base.startswith('v_permlane') and w & c.rd: n = max(n, 2)
            if getattr(c, 'dpp', False) and w & c.rd: n = max(n, 2)
            if c.base in ('v_readfirstlane_b32', 'v_readlane_b32') and w & c.rd: n = max(n, 1)
            if p.kind == 'trans' and w & (c.rd | c.wr): n = max(n, 1)
            if sg(p.wr) & c.rd: n = max(n, 2)
            if ('op_sel' in p.mods and not p.base.startswith('v_pk') or 'sdwa' in p.op) and w & (c.rd | c.wr): n = max(n, 1)
            if p.base.startswith('v_dot') and w & (c.rd | c.wr) and not (c.base == p.base and not (w & set().union(*[regs_of(x) for x in c.ops[1:3]]))): n = max(n, 3)
        if p.kind == 'trans' and c.kind in ('ds', 'vmem') and w & c.rd: n = max(n, 1)
        if p.base.startswith('v_dot') and c.kind in ('ds', 'vmem', 'mfma') and w & c.rd: n = max(n, 3)
        if c.kind == 'vmem' and sg(p.wr) & c.rd: n = max(n, 5)
        if c.kind == 'salu' and sg(p.wr) & c.rd: n = max(n, 5 if 'vcc' in c.base else 4)
        if 'exec' in p.wr and c.kind == 'mfma': n = max(n, 4)
    if p.kind == 'mfma':
        k = {2: 0, 4: 1, 8: 2}[p.passes]
        if c.kind == 'mfma':
            if p.wr & (c.srcA | c.srcB): n = max(n, (5, 8, 12)[k])
            if p.wr & c.srcC:
                if p.wr == c.srcC and p.passes == c.passes: n = max(n, (2, 0, 0)[k])
                else: n = max(n, (4, 6, 10)[k])
            elif p.wr & c.wr and not (p.wr == c.wr and p.passes == c.passes): n = max(n, (5, 8, 12)[k])
        elif c.kind in ('valu', 'trans', 'ds', 'vmem'):
            if p.wr & (c.rd | c.wr): n = max(n, (5, 8, 12)[k])
            if p.srcC & c.wr: n = max(n, (1, 3, 7)[k])
    if p.kind == 'salu' and 'm0' in p.wr and c.dma: n = max(n, 1)
    if p.store_data and p.store_data & c.wr: n = max(n, 2)
    return n

class Stream:
    def __init__(self):
        self.out = []; self.hist = []
        self.lgkm = []; self.vm = []; self.smem = False
        self.nops = 0; self.waits = 0; self.done = set(); self.m0 = None
    def fork(self):
        s = Stream(); s.hist = list(self.hist); s.lgkm = list(self.lgkm); s.vm = list(self.vm); s.smem = self.smem; s.done = set(self.done); s.m0 = self.m0
        return s
    def _raw(self, i):
        self.out.append(i)
        if i.kind != 'meta':
            self.hist.append(i); self.hist = self.hist[-24:]
    def _wait(self, vm=None, lg=None):
        t = 's_waitcnt'
        if vm is not None:
            vm = min(vm, 63); t += f' vmcnt({vm})'; self.vm = self.vm[len(self.vm) - vm:] if vm < len(self.vm) else self.vm
        if lg is not None:
            lg = min(lg, 15); t += f' lgkmcnt({lg})'; self.lgkm = self.lgkm[len(self.lgkm) - lg:] if lg < len(self.lgkm) else self.lgkm
            if lg == 0: self.smem = False
        self._raw(I(t)); self.waits += 1
    def e(self, text, tag=None):
        if isinstance(text, (list, tuple)):
            for t in text: self.e(t)
            return
        i = text if isinstance(text, I) else I(text, tag)
        if i.pseudo:
            self._pseudo(i); return
        if i.kind == 'meta':
            self._raw(i); return
        if i.m0: self.set_m0(i.m0)
        assert not (i.tag in self.done and i.tag not in ('rd', 'st')), 'issued after its wait: ' + i.text
        touch = i.rd | i.wr
        nl = nv = None
        for k, q in enumerate(self.lgkm):
            if q.wr & touch:
                nl = 0 if (q.kind == 'smem' or self.smem) else len(self.lgkm) - 1 - k
        for k, q in enumerate(self.vm):
            if q.wr & touch: nv = len(self.vm) - 1 - k
        if nl is not None or nv is not None: self._wait(nv, nl)
        need = 0; dist = 0
        for p in reversed(self.hist):
            need = max(need, need_states(p, i) - dist)
            dist += p.states()
            if dist >= 20: break
        if need > 0:
            self._raw(I(f's_nop {need-1}')); self.nops += need
        self._raw(i)
        if i.kind == 'ds': self.lgkm.append(i)
        if i.kind == 'smem': self.lgkm.append(i); self.smem = True
        if i.kind == 'vmem': self.vm.append(i)
        if i.base == 's_waitcnt':
            m = re.search(r'vmcnt\((\d+)\)', i.text)
            if m: n = int(m.group(1)); self.vm = self.vm[len(self.vm) - n:] if n < len(self.vm) else self.vm
            m = re.search(r'lgkmcnt\((\d+)\)', i.text)
            if m:
                n = int(m.group(1)); self.lgkm = self.lgkm[len(self.lgkm) - n:] if n < len(self.lgkm) else self.lgkm
                if n == 0: self.smem = False
    def set_m0(self, m0):
        if m0 != self.m0:
            self.m0 = m0; self.e(f's_add_u32 m0, {m0[0]}, {m0[1]}')
    def group(self, g, keep=lambda i: True):
        for i in g.head:
            if keep(i): self.e(i)
        for i in g.mem:
            if i.m0 and keep(i): self.set_m0(i.m0); break
        for i in g.mem + g.valu:
            if keep(i): self.e(i)
    def _pseudo(self, i):
        if i.op == '@call': i.tag(self); return
        assert i.op == '@wait'
        tags = set(i.text.split()[1:]); self.done |= tags
        nv = nl = None
        for k, q in enumerate(self.vm):
            if q.tag in tags: nv = len(self.vm) - 1 - k
        for k, q in enumerate(self.lgkm):
            if q.tag in tags: nl = 0 if self.smem else len(self.lgkm) - 1 - k
        if nv is not None or nl is not None: self._wait(nv, nl)
    def text(self):
        return '\n'.join(('' if (i.label or i.directive) else '    ') + i.text for i in self.out) + '\n'

def mk(x): return x if isinstance(x, I) else I(x)

class G:
    def __init__(self, head=(), mem=(), valu=()):
        self.head = [mk(x) for x in head]; self.mem = [mk(x) for x in mem]; self.valu = [mk(x) for x in valu]
    def all(self): return self.head + self.mem + self.valu
    def pipe(self): return sum(x.pipe() for x in self.head)
    def issue(self): return sum(x.cost() for x in self.all())
    def time(self): return 4*max(self.pipe(), self.issue())

def interleave(groups, fillers, lo=0, hi=None):
    hi = len(groups) if hi is None else hi
    fillers = [mk(x) for x in fillers]
    rooms = [groups[k].pipe() - groups[k].issue() for k in range(lo, hi)]
    total = sum(f.cost() for f in fillers)
    a, b = -64.0, 4096.0
    for _ in range(50):
        mid = (a + b)/2
        if sum(max(0, r + mid) for r in rooms) >= total: b = mid
        else: a = mid
    fi = 0; credit = 0.0
    for k in range(lo, hi):
        g = groups[k]; credit += max(0, rooms[k-lo] + b); placed_valu = False
        while fi < len(fillers) and (credit >= fillers[fi].cost()*0.5 or k == hi - 1):
            f = fillers[fi]
            if f.kind in ('ds', 'vmem') or f.pseudo:
                if not placed_valu: g.mem.append(f)
                elif k == hi - 1: g.valu.append(f)
                else: break
            else:
                g.valu.append(f); placed_valu = True
            credit -= f.cost(); fi += 1
    return groups
```

```python
import sys, math, struct
from asmlib import I, G, mk, Stream, interleave

KN = "recurrent_scan__sliding_local_dilated__dense_activation_gelu__prompt_kernel"
def fl(x): return '0x%08x' % struct.unpack('<I', struct.pack('<f', x))[0]

class Cfg:
    D = 3
    AD = 6
    stamps = False
    spin = 1 << 20
    rt = False
    out_flags = ''
    rot = True
    brot = 1
    p2split = 4
    p1split = 4
    sp1 = 56
    sp2 = 160
    spx = 125
    gap = 56
    fsp = (160, 95)
    asp = (175, 90)
    fmv = (97, 104)
    early = True
    pre2 = 4
    mix = True
    prot = True
    fb0 = 16
    fslow = 0
    verbose = False
    spb = 280
    nslow = 10
    swapnt = True
    pollpos = 12
    drop = ''
    prepub = 8
cfg = Cfg()

BS = 73*4096
FLAG = 0xA00000
STAMP = 0xB00000
WS_BYTES = 0xC00000
L_W, L_X, L_H, L_M = 0, 65536, 131072, 151552
HROW = 1040
L_ST = L_M
L_R = L_M + 4096
L_KH = L_M + 6144
LDS_BYTES = 163840
LOG2E = 1.4426950408889634
NEG = -1.0e30

sW, sMT, sN, sROT = 's4', 's5', 's6', 's7'
X, W, WS, BM, OUT, DBG, B1, B2, CLR, RDY, CODE, AS = [f's[{i}:{i+3}]' for i in (8, 12, 16, 20, 24, 28, 32, 36, 40, 44, 48, 84)]
sXO = [f's{52+i}' for i in range(8)]
sWO = [f's{60+i}' for i in range(8)]
sP, sCG, sBLK, sNT = 's68', 's69', 's70', 's71'
sXL, sWL, sSL = 's72', 's73', 's74'
sST = ['s75', 's76']
sT = ['s77', 's78', 's79', 's80', 's81', 's82']
sFL = 's83'
sBO, sAO, sQ = 's88', 's89', 's90'
sBL, sAL = 's78', 's79'
sMK = 's[92:93]'
sTS = 's[94:95]'; sT0 = 's[96:97]'; sSO = 's98'

def v(i, n=1): return f'v{i}' if n == 1 else f'v[{i}:{i+n-1}]'
def a(i, n=1): return f'a{i}' if n == 1 else f'a[{i}:{i+n-1}]'
class Alloc:
    def __init__(self, start): self.n = start
    def __call__(self, k=1, al=1):
        self.n = (self.n + al - 1)//al*al; r = self.n; self.n += k
        assert self.n <= 256, self.n
        return r

M32, M16, M4, SM = 'v_mfma_f32_32x32x16_bf16', 'v_mfma_f32_16x16x32_bf16', 'v_mfma_f32_4x4x4_16b_bf16', 'v_smfmac_f32_16x16x64_bf16'

al = Alloc(1)
vT = [al() for _ in range(7)]
vL16 = al(); vRDY = al(); vSTA = al()
vWD = [al() for _ in range(2)]; vWR = [al() for _ in range(2)]
vBD = [al() for _ in range(4)]; vBR = [al() for _ in range(2)]; vBX = [al() for _ in range(2)]
vIDX = al(); vSEL = al(4, 2)
vTF = [al(4, 2), al(4, 2)]; vF = al(4, 2); vCS = al(4, 2)
NF = 6
vWF = al(4*NF, 2)
vACC = [[al(16, 2), al(16, 2)], [al(16, 2), al(16, 2)]]
COMMON_END = al.n
vZ = vACC[1][0]; vXD = [vZ + 4 + i for i in range(4)]; vXR = [vZ + 8 + i for i in range(8)]; vHX = vACC[1][1]
sSTR, sCOL = 's91', 's99'
sPO = 's83'; sDL = ['s0', 's1']

def stamp(s, k):
    if not cfg.stamps: return
    s.e(f's_memtime {sTS}'); s.e('s_waitcnt lgkmcnt(0)')
    s.e(f's_sub_u32 s94, s94, s96'); s.e(f'v_mov_b32 {v(vSTA)}, s94')
    s.e(f'buffer_store_dword {v(vSTA)}, off, {WS}, {sSO} offset:{4*k}')
    s.e(f's_memrealtime {sTS}'); s.e('s_waitcnt lgkmcnt(0)')
    s.e(f's_sub_u32 s94, s94, s100'); s.e(f'v_mov_b32 {v(vSTA)}, s94')
    s.e(f'buffer_store_dword {v(vSTA)}, off, {WS}, {sSO} offset:{64+4*k}')

def lstamp(s, k):
    if cfg.stamps:
        s.e(f's_memtime {sTS}'); s.e('s_waitcnt lgkmcnt(0)'); s.e('s_sub_u32 s94, s94, s96'); s.e(f'v_mov_b32 {v(vACC[0][0] + k)}, s94')
def lflush(s, n):
    if cfg.stamps:
        for k in range(n): s.e(f'buffer_store_dword {v(vACC[0][0] + k)}, off, {WS}, {sSO} offset:{116+4*k}')

def TB(): return '7' if cfg.mix else '2'
def xjob(c):
    return [[I(f'buffer_load_dwordx4 {v(vXD[q])}, {X}, {sXO[c]} offen offset:{q*1024} lds', f'c{c}', (sXL, (c & 3)*16384))] for q in range(4)]
def wjob(c, single=None):
    if single is not None:
        return [[I(f'buffer_load_dwordx4 {v(single)}, {W}, {sWO[c & 7]} offen lds', f'c{c}', (sSL, L_W + (c & 7)*8192))]]
    return [[I(f'buffer_load_dwordx4 {v(vWD[q])}, {W}, {sWO[c & 7]} offen offset:{q*1024} lds', f'c{c}', (sWL, L_W + (c & 7)*8192))] for q in range(2)]

class Rec:
    def __init__(self): self.l = []
    def e(self, x, tag=None): self.l.append(x if isinstance(x, I) else I(x, tag))

def weave(s, units, instrs, every):
    rd = ('s_cselect_b32', 's_addc_u32', 's_cbranch_scc0', 's_cbranch_scc1')
    nowr = ('s_movk_i32', 's_mov_b32', 's_mov_b64', 's_mul_i32', 's_waitcnt', 's_nop', 's_barrier')
    def safe(k):
        for i in instrs[k:]:
            if i.base in rd: return False
            if i.kind == 'salu' and i.base not in nowr: return True
        return True
    units = list(units); n = every
    for k, i in enumerate(instrs):
        if units and n >= every and safe(k):
            for x in units.pop(0): s.e(x)
            n = 0
        s.e(i); n += 1
    for u in units:
        for x in u: s.e(x)

def prologue(s, code_bytes):
    e = s.e; t0, t1, t2, t3 = [v(x) for x in vT[:4]]
    if cfg.stamps or cfg.rt: e(f's_memtime {sT0}'); e('s_memrealtime s[100:101]')
    e('s_load_dwordx2 s[8:9], s[0:1], 0')
    e('s_load_dwordx2 s[12:13], s[0:1], 32')
    e('s_load_dwordx2 s[78:79], s[0:1], 8')
    e('s_cmp_ge_u32 s2, 256'); e('s_cbranch_scc1 L_exit')
    e('s_getpc_b64 s[48:49]')
    e(f's_mov_b32 s50, {code_bytes}'); e('s_mov_b32 s51, 0x20000')
    e('s_lshr_b32 s3, s2, 3'); e('s_lshl_b32 s77, s3, 7')
    e(f'v_lshlrev_b32 {t0}, 12, v0'); e(f'v_lshrrev_b32 {t1}, 6, v0')
    e(f'buffer_load_dword {v(vRDY)}, {t0}, {CODE}, s77 offen')
    e(f'v_readfirstlane_b32 {sW}, {t1}')
    e(f'v_lshlrev_b32 {v(vT[5])}, 8, v0'); e('v_and_b32 v0, 63, v0')
    if cfg.mix:
        e('s_and_b32 s77, s3, 3'); e(f's_lshr_b32 {sN}, s3, 2'); e(f's_and_b32 {sMT}, s2, 3'); e(f's_lshl2_add_u32 {sMT}, {sMT}, s77')
        e(f's_lshl1_add_u32 {sROT}, s77, {sN}')
    elif cfg.p1split == 4:
        e('s_and_b32 s77, s3, 3'); e(f's_lshr_b32 {sN}, s3, 2'); e(f's_and_b32 {sMT}, s2, 3'); e(f's_lshl2_add_u32 {sMT}, {sMT}, s77')
        e(f's_lshl1_add_u32 {sROT}, s77, {sN}')
    else:
        e('s_and_b32 s77, s3, 7'); e(f's_lshr_b32 {sN}, s3, 3'); e(f's_and_b32 {sMT}, s2, 1'); e(f's_lshl3_add_u32 {sMT}, {sMT}, s77')
        e(f's_lshl1_add_u32 {sROT}, {sN}, s77'); e('s_and_b32 s77, s2, 2'); e(f's_lshl1_add_u32 {sN}, s77, {sN}')
    if not cfg.rot: e(f's_mov_b32 {sROT}, 0')
    e(f's_and_b32 s77, {sROT}, 7'); e(f's_lshl_b32 {sXO[0]}, s77, 7')
    e(f's_and_b32 {sP}, {sW}, 1'); e(f's_lshr_b32 {sCG}, {sW}, 1')
    e(f's_lshl_b32 {sXL}, {sW}, 12'); e(f's_bitset1_b32 {sXL}, 16')
    e('s_mov_b32 s10, 2097152'); e('s_mov_b32 s11, s51')
    e(f's_lshl1_add_u32 s77, {sMT}, {sP}'); e('s_lshl_b32 s77, s77, 6'); e(f's_add_u32 s77, s77, {sCG}'); e('s_lshl_b32 s77, s77, 10')
    e(f'v_lshrrev_b32 {t0}, 3, v0'); e(f'v_lshrrev_b32 {t1}, 4, v0'); e(f'v_and_b32 {t2}, 7, v0')
    e(f'v_xor_b32 {t3}, {t1}, {t2}'); e(f'v_lshl_add_u32 {t3}, {t3}, 4, s77'); e(f'v_lshl_add_u32 {v(vXD[0])}, {t0}, 11, {t3}')
    e(f's_lshl4_add_u32 s77, {sMT}, {sCG}'); e(f's_lshl3_add_u32 s77, s77, {sP}'); e('s_sub_u32 s77, s77, 16'); e('s_lshl_b32 s77, s77, 10')
    e(f'v_and_b32 {t3}, 15, v0'); e(f'v_lshl_add_u32 {t3}, {t3}, 4, s77'); e(f'v_lshl_add_u32 {t3}, {t1}, 11, {t3}')
    s.set_m0((sXL, 0))
    e('s_bitcmp1_b32 s2, ' + TB())
    e('s_waitcnt lgkmcnt(0)')
    e('s_cbranch_scc0 L_nohalo')
    for i in range(4): e(I(f'buffer_load_dwordx4 {v(vHX + 4*i, 4)}, {t3}, {X}, 0 offen offset:{256*i}', 'hx'))
    e('s_mov_b32 s12, s78'); e('s_mov_b32 s13, s79')
    e('L_nohalo:')
    lstamp(s, 0)
    xj = xjob(0)
    e(xj[0][0])
    e(f'v_xor_b32 {v(vXD[1])}, 64, {v(vXD[0])}'); e(f'v_add_u32 {v(vXD[1])}, {16384-1024}, {v(vXD[1])}')
    e(f'v_add_u32 {v(vXD[2])}, {2*(16384-1024)}, {v(vXD[0])}'); e(f'v_add_u32 {v(vXD[3])}, {2*(16384-1024)}, {v(vXD[1])}')
    e(xj[1][0])
    if cfg.mix: e(f's_and_b32 {sN}, {sN}, 3'); e('s_and_b32 s77, s2, 4'); e(f's_or_b32 {sN}, {sN}, s77')
    e(f's_mul_i32 s77, {sN}, 7'); e('s_add_u32 s77, s77, 1'); e('s_lshr_b32 s77, s77, 1')
    e(f's_and_b32 {sPO}, s2, {3 if cfg.prot else 0}'); e(f's_cmp_eq_u32 {sPO}, 3'); e(f's_cselect_b32 {sPO}, 0, {sPO}'); e(f's_add_u32 s77, s77, {sPO}')
    e('s_bitcmp1_b32 s2, ' + TB()); e(f's_cselect_b32 s77, {sN}, s77'); e(f's_cselect_b32 {sSTR}, 6, 7')
    e(f's_lshl_b32 {sCOL}, s77, 7'); e(f's_lshl_b32 s14, {sSTR}, 18'); e('s_mov_b32 s15, s51'); e(f's_lshl_b32 {sSTR}, {sSTR}, 8')
    e(xj[2][0])
    e(f'v_and_b32 {t1}, 1, {t1}'); e(f'v_lshlrev_b32 {t1}, 2, {t1}'); e(f'v_xor_b32 {t1}, {t1}, {t2}'); e(f'v_lshlrev_b32 {t1}, 4, {t1}')
    e(f'v_lshl_add_u32 {t2}, {sW}, 4, {t0}'); e(f'v_mul_u32_u24 {t2}, {sSTR}, {t2}'); e(f'v_lshl_add_u32 {t2}, {t2}, 1, {t1}')
    e(f'v_add_u32 {v(vWD[0])}, {sCOL}, {t2}'); e(f's_lshl_b32 s77, {sSTR}, 4'); e('s_sub_u32 s77, s77, 1024'); e(f'v_add_u32 {v(vWD[1])}, s77, {v(vWD[0])}')
    e(xj[3][0])
    e(f's_mul_i32 {sWO[0]}, {sXO[0]}, {sSTR}'); e(f's_lshl_b32 {sWL}, {sW}, 11')
    wj = wjob(0)
    e(wj[0][0])
    for c in range(1, 4):
        e(f's_add_u32 s77, {sXO[c-1]}, 128'); e(f's_and_b32 {sXO[c]}, s77, 0x380'); e(f's_mul_i32 {sWO[c]}, {sXO[c]}, {sSTR}')
    e(wj[1][0])
    for off, r in ((80, 16), (48, 20), (16, 80), (64, 24), (72, 28), (40, 32), (56, 36)): e(f's_load_dwordx2 s[{r}:{r+1}], s[0:1], {off}')
    e('s_bitcmp1_b32 s2, ' + TB()); e('s_cbranch_scc1 L_att')
    sa = s.fork()
    s.vm = [i for i in s.vm if i.tag != 'hx']
    return sa

def common_setup(s):
    e = s.e; t0, t1 = v(vT[0]), v(vT[1])
    for c in range(4, 8):
        e(f's_add_u32 s77, {sXO[c-1]}, 128'); e(f's_and_b32 {sXO[c]}, s77, 0x380'); e(f's_mul_i32 {sWO[c]}, {sXO[c]}, {sSTR}')
    if cfg.mix:
        e(f's_xor_b32 {sNT}, {sN}, 4'); e('s_lshr_b32 s77, s3, 4'); e(f's_and_b32 {sBLK}, s2, 3'); e(f's_lshl1_add_u32 {sBLK}, {sBLK}, s77')
        e('s_and_b32 s77, s3, 3'); e(f's_lshl2_add_u32 {sBLK}, {sBLK}, s77')
    elif cfg.p2split == 8:
        e('s_and_b32 s77, s3, 3'); e(f's_lshr_b32 {sNT}, s3, 2'); e(f's_and_b32 {sBLK}, s2, 7'); e(f's_lshl2_add_u32 {sBLK}, {sBLK}, s77')
    else:
        e('s_and_b32 s77, s3, 7'); e(f's_lshr_b32 {sNT}, s3, 3'); e(f's_and_b32 {sBLK}, s2, 3'); e(f's_lshl3_add_u32 {sBLK}, {sBLK}, s77')
        e('s_andn2_b32 s77, 4, s2' if cfg.swapnt else 's_and_b32 s77, s2, 4'); e(f's_add_u32 {sNT}, {sNT}, s77')
    e(f's_lshl_b32 s77, {sNT}, 7')
    e(f'v_lshlrev_b32 {v(vBD[0])}, 10, {t0}'); e(f'v_add3_u32 {v(vBD[0])}, {v(vBD[0])}, {t1}, s77')
    e(f'v_lshlrev_b32 {v(vL16)}, 4, v0'); e(f's_lshl_b32 {sSL}, {sW}, 10')
    for i in range(4): e(f'v_mov_b32 {v(vZ+i)}, 0')
    for r, n in ((18, WS_BYTES), (26, 2097152), (30, 256), (34, 3584), (38, 1024)): e(f's_mov_b32 s{r}, {n}')
    for r in (19, 23, 27, 31, 35, 39, 43, 47, 87): e(f's_mov_b32 s{r}, s51')
    e('s_cmp_eq_u32 s2, 0'); e(f's_cselect_b32 s42, {WS_BYTES}, 0'); e('s_cselect_b32 s46, 256, 0')
    if cfg.stamps or cfg.rt:
        e(f's_lshl2_add_u32 s77, s2, {sW}'); e(f's_lshl_b32 {sSO}, s77, 7'); e(f's_add_u32 {sSO}, {sSO}, {STAMP}')
def clear_flags(s):
    e = s.e
    e('s_waitcnt lgkmcnt(0)')
    e('s_mov_b32 s40, s16'); e('s_mov_b32 s41, s17'); e('s_mov_b32 s44, s28'); e('s_mov_b32 s45, s29')
    e(f's_mov_b32 s77, {FLAG}')
    e(I(f'buffer_store_dwordx4 {v(vZ, 4)}, {v(vT[5])}, {CLR}, s77 offen sc1', 'c1'))

def read_setup(s, nslots_swapped):
    e = s.e; t0, t1, t2, t3 = [v(x) for x in vT[:4]]
    e(f'v_and_b32 {t0}, 31, v0'); e(f'v_lshrrev_b32 {t1}, 5, v0'); e(f'v_bfe_u32 {t2}, v0, 1, 3')
    e(f'v_xor_b32 {t2}, {t2}, {t1}'); e(f'v_lshlrev_b32 {t2}, 4, {t2}'); e(f'v_lshl_add_u32 {t2}, {t0}, 7, {t2}')
    e(f's_lshl_b32 s77, {sCG}, 6'); e(f'v_xor_b32 {t2}, s77, {t2}')
    e(f's_lshl_b32 s77, {sP}, 13'); e(f's_add_u32 s77, s77, {L_X}')
    if nslots_swapped:
        e(f's_lshl_b32 s82, {sCG}, 12'); e('s_add_u32 s77, s77, s82')
    e(f'v_add_u32 {v(vXR[0])}, s77, {t2}')
    for k in range(1, 4): e(f'v_xor_b32 {v(vXR[k])}, {k << 5}, {v(vXR[0])}')
    if nslots_swapped:
        for k in range(4): e(f'v_xor_b32 {v(vXR[4+k])}, 4096, {v(vXR[k])}')
    e(f'v_bfe_u32 {t0}, v0, 2, 2'); e(f'v_bfe_u32 {t2}, v0, 4, 1'); e(f'v_and_b32 {t3}, 3, v0')
    e(f'v_lshlrev_b32 {t3}, 3, {t3}'); e(f'v_lshl_add_u32 {t3}, {t2}, 5, {t3}')
    e(f'v_lshl_add_u32 {t2}, {t1}, 3, {t0}')
    w0 = v(vWR[0])
    e(f'v_lshl_add_u32 {w0}, {t2}, 7, {t3}')
    e(f'v_bfe_u32 {v(vT[4])}, v0, 3, 1'); e(f'v_xor_b32 {v(vT[4])}, {sCG}, {v(vT[4])}'); e(f'v_lshl_add_u32 {w0}, {v(vT[4])}, 6, {w0}')
    e(f's_lshl_b32 s77, {sCG}, 12'); e(f'v_add_u32 {w0}, s77, {w0}'); e(f'v_xor_b32 {v(vWR[1])}, 4096, {w0}')
    e(f'v_mov_b32 {v(vIDX)}, 0x44444444'); e(f'v_mov_b32 {v(vT[4])}, 0xeeeeeeee')
    e(f'v_and_b32 {t0}, 1, v0'); e(f'v_cmp_eq_u32 vcc, 1, {t0}'); e(f'v_cndmask_b32 {v(vIDX)}, {v(vIDX)}, {v(vT[4])}, vcc')
    e(f'v_and_b32 {t0}, 4, v0'); e(f'v_cmp_eq_u32 vcc, 0, {t0}'); e(f'v_mov_b32 {v(vT[4])}, 0x3f803f80')
    e(f'v_cndmask_b32 {v(vSEL)}, 0, {v(vT[4])}, vcc'); e(f'v_mov_b32 {v(vSEL+1)}, {v(vSEL)}')
    e(f'v_sub_u32 {v(vSEL+2)}, {v(vT[4])}, {v(vSEL)}'); e(f'v_mov_b32 {v(vSEL+3)}, {v(vSEL+2)}')
    for r in (vTF[0]+2, vTF[0]+3, vTF[1]+2, vTF[1]+3, vF+1, vF+2, vF+3, vCS, vCS+1, vCS+2, vCS+3): e(f'v_mov_b32 {v(r)}, 0')

def p2_setup(s):
    e = s.e; t0, t1, t2, t3 = [v(x) for x in vT[:4]]
    for q in range(1, 4): e(f'v_add_u32 {v(vBD[q])}, {q*(8192-1024)}, {v(vBD[0])}')
    e(f's_mul_i32 s77, {sW}, 37'); e('s_add_u32 s77, s77, -4'); e(f's_cmp_eq_u32 {sW}, 1'); e('s_cselect_b32 s77, 32, s77'); e('s_cselect_b32 s82, 38, 37')
    e(f's_cmp_eq_u32 {sW}, 0'); e('s_cselect_b32 s77, 0, s77'); e('s_cselect_b32 s82, 32, s82')
    e('s_cselect_b32 s20, s80, s20'); e('s_cselect_b32 s21, s81, s21'); e('s_cselect_b32 s3, 0, 32')
    e('s_sub_u32 s3, s77, s3'); e('s_lshl_b32 s3, s3, 14'); e('s_add_u32 s20, s20, s3'); e('s_addc_u32 s21, s21, 0')
    e('s_lshl_b32 s22, s82, 14'); e('s_lshl_b32 s86, s82, 11')
    e(f's_mul_i32 s3, {sBLK}, {BS}'); e('s_lshl_b32 s77, s77, 11'); e('s_add_u32 s3, s3, s77')
    e('s_add_u32 s84, s16, s3'); e('s_addc_u32 s85, s17, 0')
    e(f's_lshl_b32 {sQ}, {sW}, 14')
    e('s_add_u32 s82, s82, 1'); e('s_lshr_b32 s82, s82, 1')
    sh = 4 if cfg.mix else 32//cfg.p2split
    if cfg.brot == 3:
        e(f's_and_b32 s3, {sBLK}, {sh-1}'); e('s_lshl_b32 s3, s3, 2'); e('s_lshr_b32 s3, 0x10210210, s3'); e('s_and_b32 s3, s3, 3')
        e('s_mul_i32 s3, s3, s82'); e('s_mul_i32 s3, s3, 43'); e('s_add_u32 s3, s3, 64'); e('s_lshr_b32 s3, s3, 7')
    elif cfg.brot == 2:
        e(f's_and_b32 s3, {sBLK}, 1'); e('s_mul_i32 s3, s3, s82'); e('s_lshr_b32 s3, s3, 1')
    else:
        e(f's_and_b32 s3, {sBLK}, {sh-1 if cfg.brot else 0}'); e('s_mul_i32 s3, s3, s82'); e(f's_add_u32 s3, s3, {sh-1}'); e(f's_lshr_b32 s3, s3, {sh.bit_length()-1}')
    e(f's_lshl_b32 {sBO}, s3, 15'); e(f's_lshl_b32 {sAO}, s3, 12'); e(f's_lshl_b32 {sBL}, s82, 15'); e(f's_lshl_b32 {sAL}, s82, 12')
    e(f'v_bfe_u32 {t0}, v0, 2, 2'); e(f'v_lshrrev_b32 {t1}, 5, v0'); e(f'v_lshl_add_u32 {t0}, {t1}, 2, {t0}')
    e(f'v_and_b32 {t1}, 1, v0'); e(f'v_lshlrev_b32 {t1}, 5, {t1}'); e(f'v_and_b32 {t2}, 16, v0'); e(f'v_and_b32 {t3}, 2, v0')
    e(f'v_lshl_add_u32 {t1}, {t3}, 2, {t1}'); e(f'v_add_u32 {t1}, {t1}, {t2}'); e(f'v_lshl_add_u32 {t1}, {t0}, 7, {t1}')
    e(f'v_bfe_u32 {t2}, v0, 3, 1'); e(f'v_xor_b32 {t2}, {sCG}, {t2}'); e(f'v_lshl_add_u32 {t1}, {t2}, 6, {t1}')
    e(f'v_add_u32 {v(vBR[0])}, {sQ}, {t1}'); e(f'v_xor_b32 {v(vBR[1])}, 64, {v(vBR[0])}')
    for b in range(2): e(f'v_add_u32 {v(vBX[b])}, {L_X}, {v(vBR[b])}')

BUF = {}
def b_round(r, nsteps):
    u = []
    for h in range(nsteps//2):
        g = [[I(f'buffer_load_dwordx4 {v(vBD[q])}, {BM}, {sBO} offen offset:{q*1024} lds', f'b{r}', (sQ, BUF[r] + h*4096))] for q in range(4)]
        g[3] += [I(f's_add_u32 {sBO}, {sBO}, 32768'), I(f's_cmp_eq_u32 {sBO}, {sBL}'), I(f's_cselect_b32 {sBO}, 0, {sBO}')]
        u += g
    return u
def b_move(r, n, breg):
    l = [I(f'@wait b{r}')]
    for k in range(n):
        for b in range(2):
            ad = vBX[b] if BUF[r] else vBR[b]
            for h in range(2): l.append(I(f'ds_read_b64_tr_b16 {breg(8*r+k, b, h)}, {v(ad)} offset:{k*2048 + h*1024}', f'm{r}'))
    return l

def build_F(cs_ops, bias=None):
    t0, t1 = v(vT[0]), v(vT[1])
    l = list(cs_ops)
    l += [f'v_cvt_pk_bf16_f32 {t1}, {t0}, {t0}', f'v_and_b32 {t1}, 0xffff0000, {t1}', f'v_sub_f32 {t0}, {t0}, {t1}',
          f'v_cvt_pk_bf16_f32 {v(vF)}, {t1}, {t0}']
    if bias is not None: l.append(f'v_mov_b32 {v(vF+1)}, {v(bias)}')
    return l
CS_SM = [f'v_add_f32 {v(vT[0])}, {v(vCS)}, {v(vCS+1)}', f'v_mov_b32 {v(vCS)}, 0', f'v_mov_b32 {v(vCS+1)}, 0']

def stats_partial(vRS, vSQ, vSX, tmp):
    l = []
    l += [f'v_and_b32 {v(vT[2])}, 1, v0', f'v_cmp_eq_u32 vcc, 1, {v(vT[2])}', f'v_and_b32 {v(vT[2])}, 2, v0', f'v_cmp_eq_u32 {sMK}, 2, {v(vT[2])}']
    for sl in range(2):
        q0, q1 = vSQ[2*sl], vSQ[2*sl+1]
        l.append(f'v_add_f32 {v(tmp+2*sl)}, {v(vRS[sl])}, {v(vRS[sl]+1)}')
        for i in range(4): l.append(f'v_add_f32 {v(q0+i)}, {v(q0+i)}, {v(q1+i)}')
        l += [f'v_cndmask_b32 {v(q0)}, {v(q0)}, {v(q0+1)}, vcc', f'v_cndmask_b32 {v(q0+2)}, {v(q0+2)}, {v(q0+3)}, vcc',
              f'v_cndmask_b32 {v(q0)}, {v(q0)}, {v(q0+2)}, {sMK}', f'v_mov_b32 {v(q0+1)}, {v(q0)}']
    for sl in range(2):
        q0 = vSQ[2*sl]
        l += [f'v_permlane32_swap_b32 {v(q0)}, {v(q0+1)}']
    for sl in range(2):
        q0 = vSQ[2*sl]
        l += [f'v_add_f32 {v(tmp+2*sl+1)}, {v(q0)}, {v(q0+1)}']
    l.append(I(f'ds_write_b128 {v(vSX)}, {v(tmp, 4)}', 'st'))
    return l

def stats_scalars(S, Q, t, dst_m2, dst_dpk, dst_d, dst_r):
    return [f'v_mul_f32 {S}, {fl(1/512)}, {S}', f'v_mul_f32 {Q}, {fl(1/512)}, {Q}', f'v_fma_f32 {Q}, -{S}, {S}, {Q}', f'v_max_f32 {Q}, 0, {Q}',
            f'v_cvt_pk_bf16_f32 {dst_m2}, -{S}, -{S}', f'v_cvt_pk_bf16_f32 {t}, {Q}, {Q}', f'v_and_b32 {t}, 0xffff0000, {t}',
            f'v_add_f32 {t}, {fl(1e-5)}, {t}', f'v_cvt_pk_bf16_f32 {t}, {t}, {t}', f'v_and_b32 {t}, 0xffff0000, {t}',
            f'v_sqrt_f32 {t}, {t}', f'v_cvt_pk_bf16_f32 {dst_dpk}, {t}, 0', f'v_lshlrev_b32 {dst_d}, 16, {dst_dpk}', f'v_rcp_f32 {dst_r}, {dst_d}']

def zip2(x, y):
    o = []
    for i in range(max(len(x), len(y))):
        if i < len(x): o.append(x[i])
        if i < len(y): o.append(y[i])
    return o

def stats_final(vSX, tmp, tmp2, swapped, vD, vR):
    l = [f'v_xor_b32 {v(vSX)}, 2048, {v(vSX)}', f'ds_read_b128 {v(tmp2, 4)}, {v(vSX)}', f'v_cmp_gt_u32 vcc, 32, v0']
    for i in range(4): l.append(f'v_add_f32 {v(tmp+i)}, {v(tmp+i)}, {v(tmp2 + (i ^ 2 if swapped else i))}')
    l += zip2(*[stats_scalars(v(tmp+2*sl), v(tmp+2*sl+1), v(tmp2+sl), v(vTF[sl]), v(vTF[sl]+1), v(vD[sl]), v(vR[sl])) for sl in range(2)])
    for sl in range(2):
        for i in range(2): l.append(f'v_cndmask_b32 {v(vTF[sl]+i)}, 0, {v(vTF[sl]+i)}, vcc')
    return l

def build_spine(kinds, swapped, stats, first_pend, single=None, halo=None, jobs_extra=None, more=None, spb=None, stretch=1.15):
    nk = 32*len(kinds); NG = 8*len(kinds)
    def reads(k):
        if k >= nk: return []
        c, sl = k//4, k & 3; f = vWF + 4*(k % NF); l = []
        if kinds[k//32] == 'S':
            for h in range(2): l.append(I(f'ds_read_b64_tr_b16 {v(f+2*h, 2)}, {v(single[1][sl >> 1])} offset:{L_W + (c & 7)*8192 + (sl & 1)*1024 + h*256}', 'rd'))
        else:
            for h in range(2): l.append(I(f'ds_read_b64_tr_b16 {v(f+2*h, 2)}, {v(vWR[sl >> 1])} offset:{L_W + (c & 7)*8192 + (sl & 1)*2048 + h*512}', 'rd'))
        if k < 32:
            for u in range(2):
                ad = vXR[sl + 4*u] if swapped else vXR[sl]
                l.append(I(f'ds_read_b128 {a(128*u + 4*k, 4)}, {v(ad)} offset:{(c & 3)*16384 + (0 if swapped else u*4096)}', 'rd'))
        if halo and k >= 32:
            l.append(I(f'ds_read_b128 {v(halo["f"] + 4*(k % halo["n"]), 4)}, {v(halo["ad"][sl >> 1])} offset:{(c & 7)*128 + (sl & 1)*32}', 'rd'))
        return l
    def wj(c):
        if c >= NG: return []
        u = wjob(c, single[0] if kinds[c//8] == 'S' else None)
        if c % 8 == 0 and c > 0 and kinds[c//8] != 'S': u[0] = [I(x) for x in jobs_extra(c//8)] + u[0]
        return u
    def barrier(g):
        if g >= NG or (g > 10 and g % 2): return [], ([], [])
        tags = [f'c{g}'] + ([f'c{g+1}'] if g >= 10 else []) + (['st'] if g in (8, 9) else []) + (['rd'] if g <= 8 else [])
        l = [I('@wait ' + ' '.join(tags)), I('s_barrier')]
        j = []
        if g == 0: j = first_pend
        if g == 1: j = [[I(f'buffer_store_dword {v(vIDX)}, off, {RDY}, 0 sc1')]]
        if 1 <= g <= 4: j += xjob(g+3) + wj(g+3)
        if g == 5: j = wj(8) + wj(9) + wj(10)
        if g == 6: j = wj(11) + wj(12) + wj(13)
        if g == 8: j = wj(14)
        if g >= 10: j = wj(g+5) + wj(g+6)
        return l, (j, more.get(g, []))
    pre, (pend, slow) = barrier(0)
    for k in range(3): pre += reads(k)
    groups = []; first = []; after = {}
    for k in range(nk):
        st = k//32; kk = k % 32; f = v(vWF + 4*(k % NF), 4); acc = vACC[st & 1]
        first.append(len(groups))
        if kk % 2 == 0 and not (halo and st > 0):
            groups.append(G([f'{SM} {v(vCS, 4)}, {v(vSEL, 4)}, {v(vWF + 4*(k % NF), 8)}, {v(vIDX)}']))
        if halo and st > 0:
            h = v(halo['f'] + 4*(k % halo['n']), 4); ha = v(halo['acc'], 4)
            groups.append(G([f'{M16} {ha}, {h}, {f}, {ha if kk else 0}']))
        ms = []
        for u in range(1 if kinds[st] == 'S' else 2):
            x = a(128*u + 4*kk, 4); d = v(acc[u], 16)
            ab = f'{x}, {f}' if kinds[st] == 'N' else f'{f}, {x}'
            ms.append(f'{M32} {d}, {ab}, {d if kk else 0}')
        bar, jb, rd = [], ([], []), reads(k + 3)
        if k < 32 and k % 4 == 1: rd = []
        elif k < 32 and k % 4 == 2: (bar, jb), rd = barrier((k + 2)//4), reads(k + 2) + rd
        elif k >= 32 and k % 4 == 1: bar, jb = barrier((k + 3)//4)
        after[len(groups)] = jb
        if len(ms) == 2:
            h = (len(rd) + 1)//2 if not bar or k < 32 else 0
            groups.append(G([ms[0]], bar + rd[:h])); groups.append(G([ms[1]], rd[h:]))
        else:
            groups.append(G([ms[0]], bar + rd))
        if st == 0 and kk % 4 == 1:
            vRS, vSQ = stats
            for u in range(2): groups.append(G([f'{SM} {v(vRS[u], 4)}, {v(vSEL, 4)}, {a(128*u + 4*(kk-1), 8)}, {v(vIDX)}']))
            for h in range(4):
                for u in range(2):
                    x = a(128*u + 4*(kk-1) + 2*h, 2); q = v(vSQ[2*u + (h & 1)], 4)
                    groups.append(G([f'{M4} {q}, {x}, {x}, {q}']))
    first.append(len(groups))
    atk = {first[-k]: u for k, u in more.items() if k < 0}
    t = 0; due = 0; duew = 0; dueb = 0
    for n, g in enumerate(groups):
        if t >= due and (g.pipe() - g.issue() >= 2 or t >= due + 40):
            u = None
            if pend and t >= duew:
                u = pend.pop(0); tg = [x.tag for x in u if x.kind == 'vmem'][0]; c = int(tg[1:]) if tg else 0
                sp = cfg.sp1 if c < 9 else cfg.spx if c < 15 else cfg.sp2*(2 if kinds[c//8] == 'S' and n < first[96] else 1)
                duew = max(duew + sp, t + sp/2)
            elif slow and t >= dueb:
                u = slow.pop(0); sp = spb[[x.tag for x in u if x.kind == 'vmem'][0]]; dueb = max(dueb + sp, t + sp/2)
            if u:
                d = [i for i, x in enumerate(u) if x.kind == 'vmem'][0]
                groups[n-1].valu += [x for x in u[:d] if x.kind == 'valu']
                g.mem = [x for x in u[:d] if x.kind != 'valu'] + g.mem + u[d:]; due = t + (28 if n < first[32] else cfg.gap)
        if n in after: pend += after[n][0]; slow += after[n][1]
        if n in atk: slow += atk[n]
        t += 4*g.pipe()*(1.7 if n >= first[96 if nk > 96 else nk] else stretch if n >= first[32] else 1)
    assert not pend and not slow, (len(pend), len(slow))
    return pre, groups, first

def corr(st, kind, n=2):
    l = []
    for u in range(n):
        d = v(vACC[st & 1][u], 16); t = v(vTF[u], 4); f = v(vF, 4)
        l.append(G([f'{M32} {d}, {t}, {f}, {d}' if kind == 'N' else f'{M32} {d}, {f}, {t}, {d}']))
    return l

class Sched:
    def __init__(self, groups, first): self.g = groups; self.first = first
    def insert(self, k, newgroups):
        p = self.first[k]; self.g[p:p] = newgroups
        self.first = [x + len(newgroups) if i >= k else x for i, x in enumerate(self.first)]
    def fill(self, k0, k1, fillers, skip=0, cut=0):
        interleave(self.g, fillers, self.first[k0] + skip, self.first[k1] - cut)
    def emit(self, s, name):
        est = [int(sum(g.time() for g in self.g[self.first[k]:self.first[min(k+32, len(self.first)-1)]])) for k in range(0, len(self.first)-1, 32)]
        print(name, 'estimated cycles per step', est, file=sys.stderr)
        if cfg.verbose:
            t = 0; iss = {}; wt = {}
            for g in self.g:
                for i in g.all():
                    if i.kind == 'vmem' and isinstance(i.tag, str): iss.setdefault(i.tag, []).append(int(t))
                    if i.pseudo:
                        for x in i.text.split()[1:]: wt.setdefault(x, int(t))
                t += g.time()
            for k, l in iss.items(): print('   ', k, 'issued', l, 'waited', wt.get(k), file=sys.stderr)
        for n, g in enumerate(self.g):
            for k in (32, 64, 96):
                if k < len(self.first) - 1 and n == self.first[k]: stamp(s, 1 + k//32)
            s.group(g, keep)

def keep(i):
    t = i.tag if isinstance(i.tag, str) else ''
    if 'B' in cfg.drop and i.kind == 'vmem' and t[:1] == 'b': return False
    if 'H' in cfg.drop and i.kind == 'vmem' and t == 'h': return False
    if 'W' in cfg.drop and i.kind == 'vmem' and t[:1] == 'c': return False
    if 'R' in cfg.drop and i.base == 's_barrier': return False
    if 'S' in cfg.drop and i.base in (SM, M4): return False
    if 'V' in cfg.drop and i.kind in ('valu', 'trans'): return False
    return True

def staging(first_regs):
    BUF.clear()
    BUF.update({0: L_X, 1: L_X, 2: L_W, 3: L_X, 4: L_W} if cfg.early else {0: L_X, 1: L_W, 2: L_X, 3: L_W, 4: L_X})
    order = first_regs + [r for r in range(0, 256, 4) if r not in first_regs]
    def breg(k, b, h=None):
        i = 2*k + b; f, i = (a, order[i]) if i < 64 else (v, P2_BV + 4*(i - 64))
        return f(i, 4) if h is None else f(i + 2*h, 2)
    return breg
P2_BV = 208

def gelu(acc, K1, K2, Dv, tmp, pk, regs, soff, packed):
    l = []
    for half in range(2):
        seqs = []
        for j in (2*half, 2*half+1):
            r = acc + 4*j; t = tmp + 4*(j & 1); q = []
            if packed:
                for i in (0, 2): q.append(f'v_pk_mul_f32 {v(t+i, 2)}, {v(r+i, 2)}, {v(r+i, 2)}')
                for i in (0, 2): q.append(f'v_pk_fma_f32 {v(t+i, 2)}, {v(t+i, 2)}, {v(K2, 2)}, {v(K1, 2)} op_sel_hi:[1,0,0]')
                for i in (0, 2): q.append(f'v_pk_mul_f32 {v(t+i, 2)}, {v(t+i, 2)}, {v(r+i, 2)}')
                for i in range(4): q.append(f'v_exp_f32 {v(t+i)}, {v(t+i)}')
                for i in (0, 2): q.append(f'v_pk_fma_f32 {v(t+i, 2)}, {v(t+i, 2)}, {v(Dv, 2)}, {v(Dv, 2)} op_sel_hi:[1,0,0]')
                for i in range(4): q.append(f'v_rcp_f32 {v(t+i)}, {v(t+i)}')
                for i in (0, 2): q.append(f'v_pk_mul_f32 {v(t+i, 2)}, {v(t+i, 2)}, {v(r+i, 2)}')
            else:
                for i in range(4): q.append(f'v_mul_f32 {v(t+i)}, {v(r+i)}, {v(r+i)}')
                for i in range(4): q.append(f'v_fma_f32 {v(t+i)}, {v(t+i)}, {v(K2)}, {v(K1)}')
                for i in range(4): q.append(f'v_mul_f32 {v(t+i)}, {v(t+i)}, {v(r+i)}')
                for i in range(4): q.append(f'v_exp_f32 {v(t+i)}, {v(t+i)}')
                for i in range(4): q.append(f'v_fma_f32 {v(t+i)}, {v(t+i)}, {v(Dv)}, {v(Dv)}')
                for i in range(4): q.append(f'v_rcp_f32 {v(t+i)}, {v(t+i)}')
                for i in range(4): q.append(f'v_mul_f32 {v(t+i)}, {v(t+i)}, {v(r+i)}')
            o = pk + 4*half + 2*(j & 1)
            for i in range(2): q.append(f'v_cvt_pk_bf16_f32 {v(o+i)}, {v(t+2*i)}, {v(t+2*i+1)}')
            seqs.append(q)
        l += zip2(*seqs) if packed else seqs[0] + seqs[1]
        l.append(I(f'buffer_store_dwordx4 {v(pk + 4*half, 4)}, {v(vL16)}, {WS}, {soff} offen offset:{2048*half} sc1', 'h'))
    return l

def next_units():
    return (wjob(1) + xjob(1) if cfg.p1split == 4 else xjob(1) + wjob(1)) + xjob(2) + wjob(2) + xjob(3) + wjob(3)

def ffn(s):
    e = s.e; al = Alloc(COMMON_END)
    vSD = al(); vSR = [al(), al()]; vB1 = [al() for _ in range(4)]; vSX = al()
    vK1 = [al(2, 2), al(2, 2)]; vK2 = [al(2, 2), al(2, 2)]; vD = [al(2, 2), al(2, 2)]; vR = [al(), al()]
    vRS = [al(4, 2), al(4, 2)]; vSQ = [al(4, 2) for _ in range(4)]
    vG = al(8, 2); vPK = al(8, 4); vS4 = al(4, 2); vS5 = al(4, 2)
    r = Rec(); e = r.e
    common_setup(r)
    e(f's_mul_i32 s91, {sN}, 448'); e(f's_bitcmp0_b32 {sN}, 0'); e('s_cselect_b32 s3, 384, 0'); e('s_add_u32 s91, s91, s3')
    read_setup(r, True)
    t0, t1, t2, t3 = [v(x) for x in vT[:4]]
    e(f'v_lshl_add_u32 {v(vSR[0])}, {t2}, 6, {t3}'); e(f's_lshl_b32 s77, {sCG}, 11'); e(f'v_add_u32 {v(vSR[0])}, s77, {v(vSR[0])}')
    e(f'v_xor_b32 {v(vSR[1])}, 2048, {v(vSR[0])}')
    e(f'v_lshrrev_b32 {t0}, 2, v0'); e(f'v_and_b32 {t1}, 3, v0'); e(f'v_lshlrev_b32 {t1}, 4, {t1}')
    e(f's_mul_i32 s77, {sW}, {16*3584}'); e('s_add_u32 s77, s77, s91')
    e(f'v_mul_u32_u24 {v(vSD)}, 3584, {t0}'); e(f'v_add3_u32 {v(vSD)}, {v(vSD)}, {t1}, s77')
    for q in vRS + vSQ:
        for i in range(4): e(f'v_mov_b32 {v(q+i)}, 0')
    clear_flags(r)
    p2_setup(r)
    e(f'v_and_b32 {t0}, 31, v0'); e(f'v_lshlrev_b32 {t0}, 1, {t0}')
    e(f's_lshl_b32 s77, {sCG}, 6'); e('s_add_u32 s77, s77, s99')
    for st in range(2): e(f's_cmp_eq_u32 {sPO}, {2-st}'); e(f's_movk_i32 {sDL[st]}, 128'); e(f's_cselect_b32 {sDL[st]}, -256, {sDL[st]}')
    e(f'buffer_load_ushort {v(vB1[0])}, {t0}, {B1}, s77 offen'); e(f's_add_u32 s82, s77, {sDL[0]}')
    e(f'buffer_load_ushort {v(vB1[1])}, {t0}, {B1}, s82 offen'); e(f's_add_u32 s82, s82, {sDL[1]}')
    e(f'buffer_load_ushort {v(vB1[2])}, {t0}, {B1}, s82 offen')
    e(f'buffer_load_ushort {v(vB1[3])}, {t0}, {B1}, s91 offen')
    e('s_lshl_b32 s77, s77, 6'); e(f's_lshl_b32 s82, {sP}, 10'); e('s_add_u32 s82, s82, 65536')
    e(f's_lshl_b32 s3, {sMT}, 1'); e(f's_add_u32 s3, s3, {sCG}')
    e(f's_mul_i32 {sST[0]}, s3, {BS}'); e('s_xor_b32 s3, s3, 1'); e(f's_mul_i32 {sST[1]}, s3, {BS}')
    e(f's_add_u32 {sST[0]}, {sST[0]}, s82'); e(f's_add_u32 {sST[1]}, {sST[1]}, s82')
    e('s_lshl_b32 s91, s91, 6'); e(f's_add_u32 s91, s91, {sST[0]}')
    e(f's_add_u32 {sST[0]}, {sST[0]}, s77'); e(f's_add_u32 {sST[1]}, {sST[1]}, s77')
    e(f's_lshl_b32 {sFL}, {sMT}, 4'); e(f's_add_u32 {sFL}, {sFL}, {sN}')
    e(f'v_add_u32 {v(vSX)}, {sSL}, {v(vL16)}'); e(f'v_add_u32 {v(vSX)}, {L_ST}, {v(vSX)}')
    us = next_units()
    lstamp(s, 1); weave(s, us[:3], r.l, 12); lstamp(s, 2)
    e = s.e
    for u in us[3:6 + cfg.pre2]: e(u[0])
    stamp(s, 0); lflush(s, 3)
    breg = staging([128 + 4*i for i in range(16)])
    more = {cfg.fb0: b_round(0, 8)}
    if cfg.early:
        more[-cfg.fmv[1]] = b_round(1, 8); more[-cfg.fmv[1]][0].insert(0, I('@wait m0'))
    extra = lambda st: [f'v_add_u32 {v(vWD[q])}, {sDL[st-1]}, {v(vWD[q])}' for q in range(2)]
    pre, groups, first = build_spine('TTTS', True, (vRS, vSQ), us[6 + cfg.pre2:], single=(vSD, vSR), jobs_extra=extra, more=more, spb=dict(b0=cfg.fsp[0], b1=cfg.fsp[1]))
    S = Sched(groups, first)
    KC = 37
    S.insert(128, corr(3, 'T', 1)); S.insert(96, corr(2, 'T')); S.insert(64, corr(1, 'T')); S.insert(KC, corr(0, 'T'))
    fin = stats_final(vSX, vS4, vS5, True, vD, vR); fin2 = []
    for u in range(2):
        c1 = -2*LOG2E*math.sqrt(2/math.pi)
        fin2 += [f'v_mul_f32 {v(vK1[u])}, {fl(c1)}, {v(vR[u])}', f'v_mul_f32 {v(vR[u])}, {v(vR[u])}, {v(vR[u])}',
                 f'v_mul_f32 {v(vK2[u])}, {fl(0.044715)}, {v(vK1[u])}', f'v_mul_f32 {v(vK2[u])}, {v(vK2[u])}, {v(vR[u])}']
    S.fill(31, 32, build_F(CS_SM, vB1[0]))
    S.fill(30, 33, stats_partial(vRS, vSQ, vSX, vS4), skip=1)
    S.fill(33, KC, fin, cut=2)
    S.fill(KC, KC, fin2, skip=-2)
    for st in (1, 2, 3): S.fill(32*st+31, 32*st+32, build_F(CS_SM, vB1[st]), cut=1 if st == 3 else 2)
    S.fill(70, 72, [I(f'buffer_load_dword {v(vRDY)}, off, {DBG}, 0 sc1')])
    if cfg.early: S.fill(cfg.fmv[0], cfg.fmv[1], b_move(0, 8, breg))
    for st in range(3):
        gl = []
        for u in range(2):
            gl += gelu(vACC[st & 1][u], vK1[u], vK2[u], vD[u], vG, vPK, None, sST[u], False)
            if st < 2: gl += [f's_lshl_b32 s3, {sDL[st]}, 6', f's_add_u32 {sST[u]}, {sST[u]}, s3']
        if st == 0: S.fill(KC, 64, gl)
        else: S.fill(32*st + 32, 32*st + 64, gl, skip=2)
    for i in pre: e(i)
    stamp(s, 1)
    S.emit(s, 'ffn')
    stamp(s, 5)
    e('s_barrier')
    tail = [mk(i) for i in gelu(vACC[1][0], vK1[0], vK2[0], vD[0], vG, vPK, None, 's91', True)]
    return phase2(s, 'f', breg, tail)

def att(s):
    e = s.e; al = Alloc(COMMON_END)
    NH = 4
    vHR = [al(), al()]; vSX = al(); vD = [al(), al()]; vRC = [al(), al()]; vKHA = al(); vTA = al()
    vHF = al(4*NH, 2); vHA = vCS
    vQ = [al(8, 2), al(8, 2)]; vK = [al(8, 2), al(8, 2)]; vKH = [al(4, 2), al(4, 2)]
    vMK = al(24, 2); vAM = al(10, 2); vRK = [al(4), al(4)]; vPP = al(8, 2); vE = al(8, 2)
    vRS = [vK[1], vK[1] + 4]; vSQ = [vKH[0], vKH[1], vPP, vPP + 4]; vS4 = vE; vS5 = vE + 4
    e('L_att:')
    t0, t1, t2, t3 = [v(x) for x in vT[:4]]
    hx = vHX
    r = Rec(); e = r.e
    common_setup(r)
    read_setup(r, False)
    clear_flags(r)
    e(f'v_bfe_u32 {t0}, v0, 3, 1'); e(f'v_and_b32 {t1}, 3, v0'); e(f'v_lshl_add_u32 {t0}, {t0}, 2, {t1}')
    e(f's_lshl_b32 s77, {sP}, 3'); e(f'v_add_u32 {t0}, s77, {t0}')
    e(f'v_bfe_u32 {t1}, v0, 4, 1'); e(f'v_bfe_u32 {t2}, v0, 2, 1'); e(f'v_cmp_eq_u32 vcc, {t1}, {t2}')
    e(f'v_cndmask_b32 {t0}, 16, {t0}, vcc'); e(f'v_mul_u32_u24 {t0}, {HROW}, {t0}')
    e(f'v_lshrrev_b32 {t1}, 5, v0'); e(f'v_lshl_add_u32 {t0}, {t1}, 4, {t0}')
    e(f's_lshl_b32 s77, {sCG}, 6'); e(f's_add_u32 s82, s77, {L_H}'); e(f'v_add_u32 {v(vHR[0])}, s82, {t0}')
    e(f's_sub_u32 s82, {L_H + 64}, s77'); e(f'v_add_u32 {v(vHR[1])}, s82, {t0}')
    z = vACC[1][0]
    e(f'v_add_u32 {t0}, {L_H + 16*HROW}, {v(vL16)}'); e(I(f'ds_write_b128 {t0}, {v(z, 4)}', 'st'))
    e(f'v_and_b32 {t0}, 31, v0'); e(f'v_lshlrev_b32 {t1}, 2, {t1}'); e(f'v_sub_u32 {v(vT[6])}, {t0}, {t1}')
    e(f's_lshl_b32 s77, {sW}, 9'); e(f's_add_u32 s82, s77, {L_R + 32}')
    e(f'v_lshl_add_u32 {v(vTA)}, {t0}, 2, s82')
    e(f's_cmp_eq_u32 {sMT}, 0'); e(f's_cselect_b32 s99, {fl(NEG)}, 0')
    rka = []; msk = [f'v_mov_b32 {t3}, {fl(NEG)}', f'v_mov_b32 {v(vT[4])}, 0xffff', f'v_mov_b32 {v(vT[5])}, 0xffff0000']
    for i in range(4):
        k = v(vRK[0]+i)
        rka += [f'v_subrev_u32 {k}, {i}, {v(vT[6])}', f'v_and_b32 {k}, 7, {k}', f'v_lshlrev_b32 {k}, 2, {k}', f'v_sub_u32 {k}, {v(vTA)}, {k}']
        msk += [f'v_subrev_u32 {t2}, {i}, {v(vT[6])}', f'v_ashrrev_i32 {t2}, 3, {t2}']
        cc = ['vcc', sMK]
        msk.append(f'v_cmp_eq_u32 {cc[1]}, -1, {t2}')
        for j in range(-1, 4):
            if j < 3: msk.append(f'v_cmp_eq_u32 {cc[(j+1) & 1]}, {j+1}, {t2}')
            c = cc[j & 1]; m = vMK + (16 + i if j < 0 else 4*j + i); am = vAM + 2*(j+1) + (i >> 1)
            msk.append(f'v_cndmask_b32_e64 {v(m)}, {t3}, 0, {c}')
            if i % 2 == 0: msk.append(f'v_cndmask_b32_e64 {v(am)}, 0, {v(vT[4])}, {c}')
            else: msk += [f'v_cndmask_b32_e64 {v(vE)}, 0, {v(vT[5])}, {c}', f'v_or_b32 {v(am)}, {v(am)}, {v(vE)}']
        msk.append(f'v_min_f32 {v(vMK+20+i)}, s99, {v(vMK+16+i)}')
    e(f'v_mov_b32 {t2}, 1.0'); e(f'v_subrev_u32 {t3}, 32, {v(vTA)}'); e(f'ds_write_b32 {t3}, {t2}')
    e(f's_add_u32 s82, s77, {L_KH}')
    e(f'v_lshrrev_b32 {t1}, 5, v0'); e(f'v_lshlrev_b32 {t2}, 1, {t0}'); e(f'v_lshl_add_u32 {t2}, {t1}, 8, {t2}'); e(f'v_add_u32 {v(vKHA)}, s82, {t2}')
    e(f's_mov_b32 s91, s82')
    e(f's_lshl_b32 s77, {sN}, 13'); e(f's_lshl_b32 s82, {sCG}, 12'); e('s_add_u32 s77, s77, s82'); e(f's_lshl_b32 s82, {sP}, 10'); e('s_add_u32 s77, s77, s82')
    e(f's_mul_i32 {sST[0]}, {sMT}, {2*BS}'); e(f's_add_u32 {sST[0]}, {sST[0]}, s77'); e(f's_add_u32 {sST[1]}, {sST[0]}, {BS}')
    e(f's_lshl_b32 {sFL}, {sMT}, 4'); e(f's_add_u32 {sFL}, {sFL}, {sN}'); e(f's_add_u32 {sFL}, {sFL}, 8')
    e(f'v_add_u32 {v(vSX)}, {sSL}, {v(vL16)}'); e(f'v_add_u32 {v(vSX)}, {L_ST}, {v(vSX)}')
    for q in vRS + vSQ:
        for i in range(4): e(f'v_mov_b32 {v(q+i)}, 0')
    p2_setup(r)
    us = next_units()
    lstamp(s, 1); weave(s, [], r.l, 12); lstamp(s, 2)
    r = Rec(); e = r.e
    S_, Q_, one = v(vT[0]), v(vT[1]), v(vT[2])
    e(f'v_mov_b32 {one}, 0x3f803f80'); e(f'v_mov_b32 {S_}, 0'); e(f'v_mov_b32 {Q_}, 0')
    for i in range(16):
        e(f'v_dot2c_f32_bf16 {S_}, {v(hx+i)}, {one}'); e(f'v_dot2c_f32_bf16 {Q_}, {v(hx+i)}, {v(hx+i)}')
    for q in (8, 4, 2, 1):
        e(f'v_add_f32_dpp {S_}, {S_}, {S_} row_ror:{q} row_mask:0xf bank_mask:0xf')
        e(f'v_add_f32_dpp {Q_}, {Q_}, {Q_} row_ror:{q} row_mask:0xf bank_mask:0xf')
    hr, hb = vHF, vHF + 2
    for i in stats_scalars(S_, Q_, v(vT[3]), v(hb), v(vT[4]), v(vT[5]), v(hr)): e(i)
    e(f'v_and_b32 {v(hb)}, 0xffff0000, {v(hb)}'); e(f'v_mul_f32 {v(hb)}, {v(hb)}, {v(hr)}')
    e(f'v_lshrrev_b32 {t0}, 4, v0'); e(f's_lshl_b32 s77, {sCG}, 2'); e(f'v_add_u32 {t0}, s77, {t0}'); e(f'v_cmp_eq_u32 vcc, 0, {t0}')
    e(f'v_cndmask_b32 {v(hr)}, {v(hr)}, {v(z)}, vcc'); e(f'v_mov_b32 {t1}, 1.0'); e(f'v_cndmask_b32 {v(hb)}, {v(hb)}, {t1}, vcc')
    e(f's_lshl_b32 s77, {sP}, 3'); e(f'v_add_u32 {t0}, s77, {t0}'); e(f'v_mul_u32_u24 {t0}, {HROW}, {t0}'); e(f'v_add_u32 {t0}, {L_H}, {t0}')
    e(f'v_and_b32 {t1}, 15, v0'); e(f'v_lshlrev_b32 {t1}, 4, {t1}'); e(f'v_subrev_u32 {t1}, {sXO[0]}, {t1}')
    u0 = vHF + 4
    for i in range(4):
        for k in range(4):
            q = hx + 4*i + k
            e(f'v_lshlrev_b32 {v(u0+2*k)}, 16, {v(q)}'); e(f'v_and_b32 {v(u0+2*k+1)}, 0xffff0000, {v(q)}')
        for k in range(4): e(f'v_pk_fma_f32 {v(u0+2*k, 2)}, {v(u0+2*k, 2)}, {v(hr, 2)}, {v(hb, 2)} op_sel_hi:[1,0,0]')
        for k in range(4): e(f'v_cvt_pk_bf16_f32 {v(hx+4*i+k)}, {v(u0+2*k)}, {v(u0+2*k+1)}')
        e(f'v_add_u32 {t2}, {256*i}, {t1}'); e(f'v_and_b32 {t2}, 1023, {t2}'); e(f'v_add_u32 {t2}, {t0}, {t2}')
        e(I(f'ds_write_b128 {t2}, {v(hx+4*i, 4)}', 'st'))
    weave(s, us[:6 + cfg.pre2], r.l, 16)
    e = s.e
    stamp(s, 0); lflush(s, 3)
    breg = staging([128*(i & 1) + 4*(i >> 1) for i in range(16)])
    more = {8: b_round(0, 8)}
    if cfg.early:
        more[20] = b_round(1, 8); more[20][0].insert(0, I('@wait m0'))
    extra = lambda st: [f'v_add_u32 {v(vWD[q])}, 1024, {v(vWD[q])}' for q in range(2)]
    halo = dict(f=vHF, n=NH, ad=vHR, acc=vHA)
    pre, groups, first = build_spine('TTN', False, (vRS, vSQ), us[6 + cfg.pre2:], halo=halo, jobs_extra=extra, more=more, spb=dict(b0=cfg.asp[0], b1=cfg.asp[1]), stretch=1.05)
    S = Sched(groups, first)
    KC = 38
    sc, sp = vACC[1][0], vACC[1][1]
    KS = [68, 71, 81, 84]
    S.insert(96, corr(2, 'N'))
    for n in (3, 2, 1, 0):
        u, hd = n >> 1, n & 1
        q = v(vQ[u] + 4*hd, 4); kp = v(vK[0] + 4*hd, 4) if u else v(vKH[hd], 4)
        S.insert(KS[n], [G([f'{M32} {v(sc, 16)}, {v(vK[u] + 4*hd, 4)}, {q}, {v(vMK, 16)}']),
                         G([f'{M32} {v(sp, 16)}, {kp}, {q}, {v(vMK + (4 if u else 8), 16)}'])])
    S.insert(64, corr(1, 'T')); S.insert(KC, corr(0, 'T'))
    fin = stats_final(vSX, vS4, vS5, False, vD, vRC)
    S.fill(31, 32, build_F(CS_SM))
    S.fill(30, 33, stats_partial(vRS, vSQ, vSX, vS4), skip=1)
    S.fill(33, KC, fin, skip=1, cut=2)
    if cfg.early:
        S.fill(72, 77, b_move(0, 8, breg))
    l = [f'ds_write_b32 {v(vTA)}, {v(vRC[0])}', f'ds_write_b32 {v(vTA)}, {v(vRC[1])} offset:128'] + rka
    for u in range(2): l.append(f'v_mul_f32 {v(vRC[u])}, {fl(0.25*LOG2E)}, {v(vRC[u])}')
    for u in (1, 0):
        for i in range(4): l.append(f'ds_read_b32 {v(vRK[u]+i)}, {v(vRK[0]+i)} offset:{128*u}')
    for u in range(2):
        for i in range(8): l.append(f'v_cvt_pk_bf16_f32 {v(vQ[u]+i)}, {v(vACC[0][u]+2*i)}, {v(vACC[0][u]+2*i+1)}')
    for u in range(2):
        for i in range(4): l.append(f'v_mul_f32 {v(vRK[u]+i)}, {v(vRK[u]+i)}, {v(vRC[u])}')
    S.fill(KC, 47, l, skip=-2)
    S.fill(47, 63, msk)
    S.fill(56, 58, [I(f'buffer_load_dword {v(vRDY)}, off, {DBG}, 0 sc1')])
    cs_h = [f'v_mov_b32 {v(vT[0])}, {v(vHA)}']
    kh = [f'v_cvt_pk_bf16_f32 {v(vE)}, {v(vHA)}, {v(vHA+1)}', f'v_cvt_pk_bf16_f32 {v(vE+1)}, {v(vHA+2)}, {v(vHA+3)}']
    S.fill(63, 64, build_F(cs_h) + kh, skip=2, cut=2)
    vVH = vE + 4
    vh = [f'v_cvt_pk_bf16_f32 {v(vVH+2)}, {v(vHA)}, {v(vHA+1)}', f'v_cvt_pk_bf16_f32 {v(vVH+3)}, {v(vHA+2)}, {v(vHA+3)}',
          f'v_mov_b32 {v(vVH)}, 0', f'v_mov_b32 {v(vVH+1)}, 0']
    S.fill(95, 96, build_F(cs_h) + vh, skip=2, cut=2)
    l = [f'ds_write_b16 {v(vKHA)}, {v(vE)}', f'ds_write_b16_d16_hi {v(vKHA)}, {v(vE)} offset:64',
         f'ds_write_b16 {v(vKHA)}, {v(vE+1)} offset:128', f'ds_write_b16_d16_hi {v(vKHA)}, {v(vE+1)} offset:192',
         f'v_and_b32 {t2}, 7, v0', f'v_lshrrev_b32 {t3}, 5, v0', f'v_lshlrev_b32 {t3}, 3, {t3}', f'v_lshl_add_u32 {t2}, {t2}, 6, {t3}', f'v_add_u32 {t2}, s91, {t2}',
         f'ds_read2_b64 {v(vKH[0], 4)}, {t2} offset0:0 offset1:2', f'ds_read2_b64 {v(vKH[1], 4)}, {t2} offset0:4 offset1:6']
    for u in range(2):
        for i in range(8): l.append(f'v_cvt_pk_bf16_f32 {v(vK[u]+i)}, {v(vACC[1][u]+2*i)}, {v(vACC[1][u]+2*i+1)}')
    S.fill(64, KS[0], l, skip=-2, cut=2)
    mA, mB, mC = v(vT[2]), v(vT[3]), v(vT[4])
    for u in range(2):
        def merge(hd):
            q = []
            for i in range(4): q.append(f'v_max3_f32 {v(vE+4*hd+i)}, {v(sc+i)}, {v(sc+4+i)}, {v(sc+8+i)}')
            for i in range(4): q.append(f'v_max3_f32 {v(vE+4*hd+i)}, {v(vE+4*hd+i)}, {v(sc+12+i)}, {v(sp+12+i)}')
            return q
        S.fill(KS[2*u], KS[2*u+1], merge(0), skip=3, cut=2)
        l = merge(1)
        for n in range(8): l.append(f'v_mul_f32 {v(vE+n)}, {v(vE+n)}, {v(vRK[u] + (n & 3))}')
        l += [f'v_max3_f32 {mA}, {v(vE)}, {v(vE+1)}, {v(vE+2)}', f'v_max3_f32 {mB}, {v(vE+4)}, {v(vE+5)}, {v(vE+6)}',
              f'v_max_f32 {mA}, {mA}, {v(vE+3)}', f'v_max_f32 {mB}, {mB}, {v(vE+7)}',
              f'v_permlane32_swap_b32 {mA}, {mB}', f'v_max_f32 {mB}, {mA}, {mB}', f'v_mov_b32 {mA}, {mB}', f'v_permlane32_swap_b32 {mA}, {mB}']
        for n in range(8): l.append(f'v_sub_f32 {v(vE+n)}, {v(vE+n)}, {mA if n < 4 else mB}')
        for n in range(8): l.append(f'v_exp_f32 {v(vE+n)}, {v(vE+n)}')
        l += [f'v_add_f32 {mA}, {v(vE)}, {v(vE+1)}', f'v_add_f32 {mB}, {v(vE+4)}, {v(vE+5)}', f'v_add_f32 {mA}, {mA}, {v(vE+2)}', f'v_add_f32 {mB}, {mB}, {v(vE+6)}',
              f'v_add_f32 {mA}, {mA}, {v(vE+3)}', f'v_add_f32 {mB}, {mB}, {v(vE+7)}']
        for n in range(4): l.append(f'v_mul_f32 {v(vE+n)}, {v(vE+n)}, {v(vRK[u] + n)}')
        l += [f'v_permlane32_swap_b32 {mA}, {mB}', f'v_add_f32 {mB}, {mA}, {mB}', f'v_mul_f32 {mB}, {mB}, {v(vRC[u])}', f'v_rcp_f32 {mB}, {mB}']
        for n in range(4, 8): l.append(f'v_mul_f32 {v(vE+n)}, {v(vE+n)}, {v(vRK[u] + (n & 3))}')
        l += [f'v_mov_b32 {mA}, {mB}', f'v_permlane32_swap_b32 {mA}, {mB}']
        for n in range(8): l.append(f'v_mul_f32 {v(vE+n)}, {v(vE+n)}, {mA if n < 4 else mB}')
        for n in range(4): l.append(f'v_cvt_pk_bf16_f32 {v(vPP+4*u+n)}, {v(vE+2*n)}, {v(vE+2*n+1)}')
        S.fill(KS[2*u+1], KS[2] if u == 0 else 95, l, skip=3, cut=-3 if u == 0 else 0)
    for i in pre: e(i)
    stamp(s, 1)
    S.emit(s, 'att')
    stamp(s, 5)
    e('s_barrier')
    pe = [vWF, vWF + 12]
    def expand(n):
        b = pe[n & 1]; q = []
        if n < 2: q += [f'v_mov_b32 {v(b)}, 0', f'v_mov_b32 {v(b+1)}, 0']
        for m in range(10): q.append(f'v_and_b32 {v(b+2+m)}, {v(vPP + 2*n + (m & 1))}, {v(vAM+m)}')
        return q
    r = Rec(); e = r.e
    for i in expand(0) + expand(1): e(i)
    for u in range(2):
        for i in range(8): e(f'v_cvt_pk_bf16_f32 {v(vQ[u]+i)}, {v(vACC[0][u]+2*i)}, {v(vACC[0][u]+2*i+1)}')
    od = [vACC[1][0], vACC[1][1], vACC[0][0], vACC[0][1]]
    def pv(n):
        u = n >> 1; b = pe[n & 1]; d = v(od[n], 16)
        prev = v(vQ[0] + 4, 4) if u else v(vVH, 4)
        return [G([f'{M32} {d}, {prev}, {v(b, 4)}, 0']), G([f'{M32} {d}, {v(vQ[u], 4)}, {v(b+4, 4)}, {d}']), G([f'{M32} {d}, {v(vQ[u]+4, 4)}, {v(b+8, 4)}, {d}'])]
    def ostore(n):
        u, hd = n >> 1, n & 1; o = vK[0] + 4*n; o += (-o) % 2
        q = [f'v_cvt_pk_bf16_f32 {v(o+i)}, {v(od[n] + 8*hd + 2*i)}, {v(od[n] + 8*hd + 2*i + 1)}' for i in range(4)]
        return q + [I(f'buffer_store_dwordx4 {v(o, 4)}, {v(vL16)}, {WS}, {sST[u]} offen offset:{2048*hd} sc1', 'h')]
    gs = pv(0) + interleave(pv(1), expand(2)) + interleave(pv(2), expand(3) + ostore(0)) + interleave(pv(3), ostore(1))
    for g in gs:
        for i in g.all(): e(i)
    for i in ostore(2) + ostore(3): e(i)
    return phase2(s, 'a', breg, r.l)

def phase2(s, pfx, breg, tail):
    e = s.e; al = Alloc(vIDX)
    vA = [al(), al()]; vRA = [al() for _ in range(3)]; vOA = al(); vWA = al()
    acc = [al(16, 2) for _ in range(4)]
    vX = al(8, 2); vB2 = al(16, 2)
    NA = cfg.AD + 1
    vAR = al(8*NA, 2); vS = al(16, 2)
    assert al.n <= P2_BV
    t0, t1, t2, t3 = [v(x) for x in vT[:4]]
    R = 1 if cfg.early else 0
    def units(z, us):
        for u in us:
            for i in u: z.e(i)
    nxt = b_round(R+1, 8)
    for i in tail: e(i)
    stamp(s, 6)
    units(s, nxt[:cfg.prepub])
    for i in b_move(R, 8, breg): e(i)
    e('@wait h')
    e(f'v_readfirstlane_b32 s3, {v(vRDY)}'); e('s_cmp_lg_u32 s3, 0'); e(f's_cbranch_scc1 L_{pfx}_rdy')
    e(f's_mov_b32 s82, {cfg.spin}')
    keep = list(s.vm)
    e(f'L_{pfx}_rspin:')
    e(f'buffer_load_dword {v(vRDY)}, off, {DBG}, 0 sc1')
    e('s_sub_u32 s82, s82, 1'); e(f's_cbranch_scc1 L_{pfx}_rdy')
    e(f'v_readfirstlane_b32 s3, {v(vRDY)}'); e('s_cmp_eq_u32 s3, 0'); e(f's_cbranch_scc1 L_{pfx}_rspin')
    e(f'L_{pfx}_rdy:')
    s.vm = keep
    e(f's_lshl_b32 {sFL}, {sFL}, 8'); e(f's_lshl_b32 s3, {sW}, 2'); e(f's_add_u32 {sFL}, {sFL}, s3'); e(f's_add_u32 {sFL}, {sFL}, {FLAG}')
    e(f'v_mov_b32 {t0}, 1'); e('s_mov_b64 exec, 1')
    e(f'buffer_store_dword {t0}, off, {WS}, {sFL} sc1')
    e('s_mov_b64 exec, -1')
    stamp(s, 7)
    r = Rec(); e = r.e
    e(f's_lshl_b32 s3, {sP}, 10'); e(f'v_add_u32 {v(vA[0])}, s3, {v(vL16)}'); e(f'v_xor_b32 {v(vA[1])}, 1024, {v(vA[0])}')
    e(f's_lshl_b32 s3, {sNT}, 7'); e(f's_lshl_b32 s77, {sCG}, 6'); e('s_add_u32 s3, s3, s77')
    e(f'v_and_b32 {t0}, 32, v0'); e(f'v_add_u32 {t0}, s3, {t0}')
    e(f's_lshl_b32 s77, {sBLK}, 6'); e(f's_add_u32 s77, s77, {sP}'); e('s_lshl_b32 s77, s77, 10')
    e(f'v_and_b32 {t1}, 31, v0'); e(f'v_lshlrev_b32 {t1}, 11, {t1}'); e(f'v_add3_u32 {v(vOA)}, {t0}, {t1}, s77')
    for h in range(2): e(f'buffer_load_dwordx4 {v(vS + 4*h, 4)}, {t0}, {B2}, 0 offen offset:{16*h}')
    for h in range(2): e(f'buffer_load_dwordx4 {v(vX + 4*h, 4)}, {v(vOA)}, {X}, 0 offen offset:{16*h}')
    e(f's_add_u32 s3, {sQ}, {L_X}'); e(f'v_add_u32 {v(vWA)}, s3, {v(vL16)}')
    for i in range(3):
        e(f's_cmp_gt_u32 {sW}, {i}'); e(f's_cselect_b32 s3, {i}, {i+1}'); e(f's_xor_b32 s77, s3, {sW}'); e('s_lshl_b32 s77, s77, 12')
        e('s_lshl_b32 s3, s3, 14'); e('s_add_u32 s3, s3, s77'); e(f's_add_u32 s3, s3, {L_X - 4096}'); e(f'v_add_u32 {v(vRA[i])}, s3, {v(vL16)}')
    e(f's_lshr_b32 s3, {sBLK}, 1'); e('s_lshl_b32 s3, s3, 12'); e(f's_add_u32 s91, s3, {FLAG}')
    e(f'v_lshrrev_b32 {t2}, 2, v0'); e(f'v_and_b32 {t3}, 3, v0'); e(f'v_lshlrev_b32 {t3}, 2, {t3}'); e(f'v_lshl_add_u32 {t2}, {t2}, 8, {t3}')
    e(f's_cmp_eq_u32 {sW}, 2'); e('s_mov_b32 s92, 0xfff'); e('s_cselect_b32 s92, 0xffff00, s92'); e(f's_cmp_eq_u32 {sW}, 3'); e('s_cselect_b32 s92, 0xfff00000, s92'); e('s_mov_b32 s93, 0')
    e(f'v_mov_b32 {t3}, 1')
    weave(s, nxt[cfg.prepub:], r.l, 8)
    e = s.e
    for q in range(R+2, 3):
        e(f'@wait m{q-2}'); units(s, b_round(q, 8))
        for i in b_move(q-1, 8, breg): e(i)
    e('@wait m1')
    e(f's_cmp_eq_u32 {sW}, 0'); e(f's_cbranch_scc1 L_{pfx}_w0')
    s0 = s.fork()
    outs = [s, s0]
    for w0, z in ((False, s), (True, s0)):
        e = z.e; ns = 32 if w0 else 38; lb = f'L_{pfx}{int(w0)}'
        poll = [f's_mov_b64 exec, {sMK}', f'buffer_load_dword {t3}, {t2}, {WS}, s91 offen sc1', 's_mov_b64 exec, -1']
        if w0:
            e(f'L_{pfx}_w0:'); e('s_mov_b32 s92, 0'); e('s_mov_b32 s93, -1')
            last = b_round(3, 8); late = b_move(2, 8, breg) + b_move(3, 8, breg)
        else:
            units(z, b_round(3, 8))
            for i in b_move(2, 8, breg): e(i)
            e('@wait m2')
            last = b_round(4, 6); late = b_move(3, 8, breg) + b_move(4, 6, breg)
        pp = len(last) - cfg.pollpos
        units(z, last[:pp]); e(poll); units(z, last[pp:])
        stamp(z, 8)
        e(f'v_cmp_ne_u32 vcc, 1, {t3}'); e(f's_cbranch_vccz {lb}_go')
        keepvm = list(z.vm)
        e(f's_mov_b32 s82, {cfg.spin}')
        e(f'{lb}_poll:')
        e(poll)
        e('s_sub_u32 s82, s82, 1'); e(f's_cbranch_scc1 {lb}_go')
        e(f'v_cmp_ne_u32 vcc, 1, {t3}'); e(f's_cbranch_vccnz {lb}_poll')
        e(f'{lb}_go:')
        z.vm = keepvm
        stamp(z, 9)
        def aload(k):
            if k >= ns: return []
            l = [I(f's_add_u32 {sAO}, {sAO}, 4096'), I(f's_cmp_eq_u32 {sAO}, {sAL}'), I(f's_cselect_b32 {sAO}, 0, {sAO}')] if k % 2 == 0 and k else []
            for u in range(2): l.append(I(f'buffer_load_dwordx4 {v(vAR + 8*(k % NA) + 4*u, 4)}, {v(vA[u])}, {AS}, {sAO} offen offset:{(k & 1)*2048} sc1'))
            return l
        for k in range(cfg.AD):
            for i in aload(k): e(i)
        gs = []
        for k in range(ns):
            ld = aload(k + cfg.AD)
            order = (1, 3, 2, 0) if k == ns - 1 else (0, 2, 1, 3)
            for n, sl in enumerate(order):
                u, b = sl & 1, sl >> 1; d = v(acc[sl], 16)
                dd = v(vS, 16) if (w0 and k == ns - 1 and sl == 0) else d
                gs.append(G([f'{M32} {dd}, {breg(k, b)}, {v(vAR + 8*(k % NA) + 4*u, 4)}, {d if k else 0}'], ld[:-1] if n == 0 else ld[-1:] if n == 2 else []))
        interleave(gs, late, 0, 4*15 if w0 else 4*22)
        l = []
        for i in range(8): l += [f'v_lshlrev_b32 {v(vB2+2*i)}, 16, {v(vS+i)}', f'v_and_b32 {v(vB2+2*i+1)}, 0xffff0000, {v(vS+i)}']
        interleave(gs, l, 4*24, 4*30)
        for g in gs: z.group(g)
        stamp(z, 10)
        for sl in (1, 3, 2):
            for j in range(4): e(I(f'ds_write_b128 {v(vWA)}, {v(acc[sl] + 4*j, 4)} offset:{(sl-1)*4096 + j*1024}', 'r'))
        xs = vAR
        for i in range(8):
            e(f'v_lshlrev_b32 {v(xs+2*i)}, 16, {v(vX+i)}'); e(f'v_and_b32 {v(xs+2*i+1)}, 0xffff0000, {v(vX+i)}')
        e('@wait r'); e('s_barrier')
        dst = [acc[0] if w0 else vS, acc[1], acc[2]]
        for j in range(4):
            for i in ((0, 1, 2) if w0 else (1, 2, 0)): e(f'ds_read_b128 {v(dst[i] + 4*j, 4)}, {v(vRA[i])} offset:{j*1024}')
        g, tt, o = acc[0], acc[3], vX
        c2 = vAR + 16
        e(f'v_mov_b32 {v(c2)}, {fl(-LOG2E)}'); e(f'v_mov_b32 {v(c2+2)}, 1.0')
        for h in range(2):
            P = [8*h + 2*i for i in range(4)]
            for i in P: e(f'v_pk_add_f32 {v(g+i, 2)}, {v(g+i, 2)}, {v(vB2+i, 2)}')
            for i in P: e(f'v_pk_add_f32 {v(acc[1]+i, 2)}, {v(acc[1]+i, 2)}, {v(acc[2]+i, 2)}')
            for i in P: e(f'v_pk_add_f32 {v(g+i, 2)}, {v(g+i, 2)}, {v(acc[1]+i, 2)}')
            for i in P: e(f'v_pk_mul_f32 {v(tt+i, 2)}, {v(g+i, 2)}, {v(c2, 2)} op_sel_hi:[1,0]')
            for i in range(8*h, 8*h+8): e(f'v_exp_f32 {v(tt+i)}, {v(tt+i)}')
            for i in P: e(f'v_pk_add_f32 {v(tt+i, 2)}, {v(tt+i, 2)}, {v(c2+2, 2)} op_sel_hi:[1,0]')
            for i in P: e(f'v_pk_mul_f32 {v(g+i, 2)}, {v(g+i, 2)}, {v(vS+i, 2)}')
            for i in range(8*h, 8*h+8): e(f'v_rcp_f32 {v(tt+i)}, {v(tt+i)}')
            for i in P: e(f'v_pk_fma_f32 {v(g+i, 2)}, {v(g+i, 2)}, {v(tt+i, 2)}, {v(xs+i, 2)}')
            for i in P: e(f'v_cvt_pk_bf16_f32 {v(o + i//2)}, {v(g+i)}, {v(g+i+1)}')
            e(f'buffer_store_dwordx4 {v(o + 4*h, 4)}, {v(vOA)}, {OUT}, 0 offen offset:{16*h} {cfg.out_flags}')
        stamp(z, 11)
        if cfg.stamps or cfg.rt:
            keep = cfg.stamps; cfg.stamps = True
            e('s_waitcnt vmcnt(0)'); stamp(z, 12); cfg.stamps = keep
            e(f's_memrealtime {sTS}'); e('s_waitcnt lgkmcnt(0)')
            for k, r in ((13, 's100'), (14, 's94')):
                e(f'v_mov_b32 {v(vSTA)}, {r}'); e(f'buffer_store_dword {v(vSTA)}, off, {WS}, {sSO} offset:{4*k}')
        e('s_endpgm')
    return outs

HEADER = open('cdna_kernels/%s.s.ref' % KN[:-7]).read().split('; Override launch')[0] if len(sys.argv) >= 0 else ''
def generate(code_bytes=65536):
    s = Stream(); sa = prologue(s, code_bytes)
    streams = ffn(s) + att(sa)
    body = ''.join(x.text() for x in streams)
    info = [(len([i for i in x.out if i.kind != 'meta']), x.nops, x.waits) for x in streams]
    txt = HEADER + f'''; @launch grid=(256,1,1) block=(256,1,1) lds={LDS_BYTES}
.amdgcn_target "amdgcn-amd-amdhsa--gfx950"
.text
.globl {KN}
.p2align 8
.type {KN},@function
{KN}:
{body}L_exit:
    s_endpgm
L_code_end:
.section .rodata,"a"
.p2align 6
.amdhsa_kernel {KN}
  .amdhsa_next_free_vgpr 512
  .amdhsa_next_free_sgpr 102
  .amdhsa_accum_offset 256
  .amdhsa_group_segment_fixed_size 0
  .amdhsa_kernarg_size 88
  .amdhsa_user_sgpr_count 2
  .amdhsa_user_sgpr_kernarg_segment_ptr 1
  .amdhsa_system_sgpr_workgroup_id_x 1
.end_amdhsa_kernel
'''
    return txt, info

if __name__ == '__main__':
    out = sys.argv[1]
    for kv in sys.argv[2:]:
        k, val = kv.split('=', 1)
        setattr(cfg, k, eval(val))
    txt, info = generate(f'L_code_end - {KN} - 128')
    open(out, 'w').write(txt)
    print('streams (instr, nop states, waits):', info, file=sys.stderr)
```

```python
KN = "recurrent_scan__sliding_local_dilated__dense_activation_gelu__prompt_kernel"
src = open('y0.s').read()
TS = 0xB80000
def tiny(name, body, vg=8):
    return f'''
.text
.p2align 8
.globl {name}
.type {name},@function
{name}:
    s_memrealtime s[12:13]
    s_load_dwordx2 s[8:9], s[0:1], 80
    s_mov_b32 s10, 0xC00000
    s_mov_b32 s11, 0x20000
    s_mov_b32 s4, {TS}
    s_waitcnt lgkmcnt(0)
    s_cmp_ge_u32 s2, 1
    s_cbranch_scc1 L_{name}_end
{body}
L_{name}_end:
    s_endpgm
.section .rodata,"a"
.p2align 6
.amdhsa_kernel {name}
  .amdhsa_next_free_vgpr 8
  .amdhsa_next_free_sgpr 24
  .amdhsa_accum_offset 8
  .amdhsa_group_segment_fixed_size 0
  .amdhsa_kernarg_size 88
  .amdhsa_user_sgpr_count 2
  .amdhsa_user_sgpr_kernarg_segment_ptr 1
  .amdhsa_system_sgpr_workgroup_id_x 1
.end_amdhsa_kernel
'''
W = '''    v_mov_b32 v1, s12
    buffer_store_dword v1, off, s[8:11], s4 sc1
    s_waitcnt vmcnt(0)
'''
def spin(lbl, srd, so):
    return f'''    s_waitcnt vmcnt(0)
    buffer_load_dword v1, off, {srd}, {so} sc1
    s_waitcnt vmcnt(0)
    v_readfirstlane_b32 s5, v1
    s_nop 4
    s_add_u32 s5, s5, 4000
    s_mov_b32 s7, 20000
{lbl}:
    s_sleep 2
    s_memrealtime s[94:95]
    s_waitcnt lgkmcnt(0)
    s_sub_u32 s7, s7, 1
    s_cbranch_scc1 {lbl}_x
    s_sub_u32 s6, s94, s5
    s_cmp_lt_i32 s6, 0
    s_cbranch_scc1 {lbl}
{lbl}_x:
'''
def main(write, spins):
    s = src
    if write:
        s = s.replace(f'{KN}:\n', f'{KN}:\n    s_memrealtime s[100:101]\n', 1)
        s = s.replace('L_f_rdy:\n', f'L_f_rdy:\n    s_cmp_lg_u32 s2, 0\n    s_cbranch_scc1 L_nw\n    v_mov_b32 v2, s100\n    s_mov_b32 s98, {TS}\n    buffer_store_dword v2, off, s[16:19], s98 sc1\n    s_waitcnt vmcnt(0)\nL_nw:\n', 1)
    if spins:
        parts = s.split('    s_endpgm\n'); out = ''
        for i, p in enumerate(parts[:-1]):
            out += p + (f'    s_mov_b32 s98, {TS}\n' + spin(f'L_sp{i}', 's[16:19]', 's98') if i < 4 else '') + '    s_endpgm\n'
        s = out + parts[-1]
    return s
LM = f'; @launch kernel={KN} grid=(256,1,1) block=(256,1,1) lds=163840'
LT = lambda n: f'; @launch kernel={n} grid=(1,1,1) block=(64,1,1) lds=0'
O = '; @launch grid=(256,1,1) block=(256,1,1) lds=163840'
open('z_main.s', 'w').write(main(True, True).replace(O, LM))
open('z_pre.s', 'w').write(main(False, True).replace(O, LT('ta_kernel') + '\n' + LM) + tiny('ta_kernel', W))
open('z_post.s', 'w').write(main(True, False).replace(O, LM + '\n' + LT('tb_kernel')) + tiny('tb_kernel', spin('L_tb', 's[8:11]', 's4').replace('s[94:95]', 's[14:15]').replace('s94', 's14')))
open('z_both.s', 'w').write(main(False, False).replace(O, LT('ta_kernel') + '\n' + LM + '\n' + LT('tb_kernel')) + tiny('ta_kernel', W) + tiny('tb_kernel', spin('L_tb', 's[8:11]', 's4').replace('s[94:95]', 's[14:15]').replace('s94', 's14')))
```

```python
KN = "recurrent_scan__sliding_local_dilated__dense_activation_gelu__prompt_kernel"
src = open('y2.s').read()
TS = 0xB80000
def tiny(name, body, vg=8):
    return f'''
.text
.p2align 8
.globl {name}
.type {name},@function
{name}:
    s_memrealtime s[12:13]
    s_load_dwordx2 s[8:9], s[0:1], 80
    s_mov_b32 s10, 0xC00000
    s_mov_b32 s11, 0x20000
    s_mov_b32 s4, {TS}
    s_waitcnt lgkmcnt(0)
    s_cmp_ge_u32 s2, 1
    s_cbranch_scc1 L_{name}_end
{body}
L_{name}_end:
    s_endpgm
.section .rodata,"a"
.p2align 6
.amdhsa_kernel {name}
  .amdhsa_next_free_vgpr 8
  .amdhsa_next_free_sgpr 24
  .amdhsa_accum_offset 8
  .amdhsa_group_segment_fixed_size 0
  .amdhsa_kernarg_size 88
  .amdhsa_user_sgpr_count 2
  .amdhsa_user_sgpr_kernarg_segment_ptr 1
  .amdhsa_system_sgpr_workgroup_id_x 1
.end_amdhsa_kernel
'''
W = '''    v_mov_b32 v1, s12
    buffer_store_dword v1, off, s[8:11], s4 sc1
    s_waitcnt vmcnt(0)
'''
def spin(lbl, srd, so):
    return f'''    s_waitcnt vmcnt(0)
    buffer_load_dword v1, off, {srd}, {so} sc1
    s_waitcnt vmcnt(0)
    v_readfirstlane_b32 s5, v1
    s_nop 4
    s_add_u32 s5, s5, 4000
    s_mov_b32 s7, 20000
{lbl}:
    s_sleep 2
    s_memrealtime s[94:95]
    s_waitcnt lgkmcnt(0)
    s_sub_u32 s7, s7, 1
    s_cbranch_scc1 {lbl}_x
    s_sub_u32 s6, s94, s5
    s_cmp_lt_i32 s6, 0
    s_cbranch_scc1 {lbl}
{lbl}_x:
'''
def main(write, spins):
    s = src
    if write:
        s = s.replace(f'{KN}:\n', f'{KN}:\n    s_memrealtime s[100:101]\n', 1)
        s = s.replace('L_f_rdy:\n', f'L_f_rdy:\n    s_cmp_lg_u32 s2, 0\n    s_cbranch_scc1 L_nw\n    v_mov_b32 v2, s100\n    s_mov_b32 s98, {TS}\n    buffer_store_dword v2, off, s[16:19], s98 sc1\n    s_waitcnt vmcnt(0)\nL_nw:\n', 1)
    if spins:
        parts = s.split('    s_endpgm\n'); out = ''
        for i, p in enumerate(parts[:-1]):
            out += p + (f'    s_mov_b32 s98, {TS}\n' + spin(f'L_sp{i}', 's[16:19]', 's98') if i < 4 else '') + '    s_endpgm\n'
        s = out + parts[-1]
    return s
LM = f'; @launch kernel={KN} grid=(256,1,1) block=(256,1,1) lds=163840'
LT = lambda n: f'; @launch kernel={n} grid=(1,1,1) block=(64,1,1) lds=0'
O = '; @launch grid=(256,1,1) block=(256,1,1) lds=163840'
open('z_main2.s', 'w').write(main(True, True).replace(O, LM))
```
